```python
import torch

def _softmax(x, axis=-1):
    return torch.softmax(x, dim=axis)
def _gelu(x):
    return torch.nn.functional.gelu(x, approximate="tanh")
def _silu(x):
    return torch.nn.functional.silu(x)
def _sigmoid(x):
    return torch.sigmoid(x)
def _layernorm(x, axis=-1, eps=1e-5):
    m = x.mean(dim=axis, keepdim=True)
    v = x.var(dim=axis, keepdim=True, unbiased=False)
    return (x - m) / torch.sqrt(v + eps)
def _scatter_add(tgt, idx, src, axis=0):
    return tgt.clone().index_add_(axis, idx, src)
def _segment_sum(src, seg, n):
    out = torch.zeros((n,) + src.shape[1:], dtype=src.dtype)
    return out.index_add_(0, seg, src)
def _pad(x, pw):
    flat = tuple(v for pair in reversed(pw) for v in pair)
    return torch.nn.functional.pad(x, flat)

kernel_name = 'interleave_layers__sliding_block__dense_activation_relu__prompt'

def setup_inputs():

    _w = (lambda a: (lambda t: t.to(torch.bfloat16) if t.is_floating_point() else t)(torch.as_tensor(a)))
    def _A_setup():
        B, S, D = 1, 2048, 448
        return {
            "x": _w((lambda *s: torch.randn(*s, dtype=torch.bfloat16) * 0.05)(B, S, D)),
            "wqkv": _w((lambda *s: torch.randn(*s, dtype=torch.bfloat16) * 0.05)(D, 3 * D)),
            "wo": _w((lambda *s: torch.randn(*s, dtype=torch.bfloat16) * 0.05)(D, D)),
        }
    _A_in = _A_setup()

    def _B_setup():
        B, S, D, Dff = 1, 2048, 448, 1792
        return {
            "x": _w((lambda *s: torch.randn(*s, dtype=torch.bfloat16) * 0.05)(B, S, D)),
            "w1": _w((lambda *s: torch.randn(*s, dtype=torch.bfloat16) * 0.05)(D, Dff)),
            "w2": _w((lambda *s: torch.randn(*s, dtype=torch.bfloat16) * 0.05)(Dff, D)),
        }
    _B_in = _B_setup()

    return {
        "A_x": _A_in["x"],
        "A_wqkv": _A_in["wqkv"],
        "A_wo": _A_in["wo"],
        "B_x": _B_in["x"],
        "B_w1": _B_in["w1"],
        "B_w2": _B_in["w2"],
    }

def reference(A_x, A_wqkv, A_wo, B_x, B_w1, B_w2):
    def _A_ref(x, wqkv, wo):
        B, S, D = x.shape
        H = 16; Dh = D // H; W = 256
        qkv = (lambda x, *d: x.permute(*d))((x @ wqkv).reshape(B, S, 3, H, Dh), 2, 0, 3, 1, 4)
        q, k, v = qkv[0], qkv[1], qkv[2]
        scores = torch.einsum("bhqd,bhkd->bhqk", q, k) * (Dh ** -0.5)
        idx = torch.arange(S)
        mask = (idx[:, None] - idx[None, :] >= 0) & (idx[:, None] - idx[None, :] < W)
        scores = torch.where(mask[None, None], scores, -1e9)
        p = _softmax(scores, axis=-1)
        o = torch.einsum("bhqk,bhkd->bhqd", p, v)
        return (lambda x, *d: x.permute(*d))(o, 0, 2, 1, 3).reshape(B, S, D) @ wo

    def _B_ref(x, w1, w2):
        h = torch.einsum("bsd,df->bsf", x, w1)
        zero = torch.zeros_like(h)
        h = torch.maximum(h, zero)
        return torch.einsum("bsf,fd->bsd", h, w2)

    x = A_x
    x = x + _A_ref(_layernorm(x, axis=-1), A_wqkv, A_wo)
    x = x + _B_ref(_layernorm(x, axis=-1), B_w1, B_w2)
    x = x + _A_ref(_layernorm(x, axis=-1), A_wqkv, A_wo)
    x = x + _B_ref(_layernorm(x, axis=-1), B_w1, B_w2)
    return x
```

```python
import re

TRANS = ('v_exp_f32', 'v_log_f32', 'v_rcp_f32', 'v_rsq_f32', 'v_sqrt_f32', 'v_sin_f32', 'v_cos_f32')
_reg_re = re.compile(r'^(-|\|)?(abs\()?([vas])(\d+|\[(\d+):(\d+)\])\)?\|?$')


def regs_of(tok):
    tok = tok.strip()
    if tok in ('vcc',):
        return {('s', 'vcc_lo'), ('s', 'vcc_hi')}
    if tok in ('vcc_lo', 'vcc_hi', 'exec_lo', 'exec_hi', 'm0'):
        return {('s', tok)}
    if tok == 'exec':
        return {('s', 'exec_lo'), ('s', 'exec_hi')}
    m = _reg_re.match(tok)
    if not m:
        return set()
    k = m.group(3)
    if m.group(5) is not None:
        return {(k, i) for i in range(int(m.group(5)), int(m.group(6)) + 1)}
    return {(k, int(m.group(4)))}


class Ins:
    __slots__ = ('text', 'op', 'ops', 'w', 'r', 'kind', 'passes', 'srcc', 'states', 'label', 'target', 'wide_store',
                 'ab', 'is_lds_dma', 'dpp')

    def __init__(self, text):
        self.text = text
        self.label = None
        self.target = None
        self.w = set(); self.r = set(); self.kind = 'other'; self.passes = 0
        self.srcc = set(); self.ab = set(); self.states = 1; self.wide_store = set(); self.is_lds_dma = False
        self.dpp = False
        t = text.split(';')[0].strip()
        if t.endswith(':'):
            self.label = t[:-1]; self.kind = 'label'; self.states = 0; self.op = ''; self.ops = []
            return
        if t.startswith('.') or not t:
            self.kind = 'dir'; self.states = 0; self.op = ''; self.ops = []
            return
        parts = t.split(None, 1)
        op = self.op = parts[0]
        rest = parts[1] if len(parts) > 1 else ''
        ops = [o.strip() for o in rest.split(',')] if rest else []
        mods = []
        if ops:
            sp = ops[-1].split()
            ops[-1] = sp[0]; mods = sp[1:]
        self.ops = ops
        R = [regs_of(o) for o in ops]
        if op == 's_nop':
            self.states = int(ops[0], 0) + 1; self.kind = 'salu'
        elif op.startswith('v_mfma'):
            self.kind = 'mfma'
            self.passes = 8 if '32x32x16' in op else 4
            assert '32x32x16_bf16' in op or '16x16x32_bf16' in op, op
            self.w = R[0]; self.ab = R[1] | R[2]; self.srcc = R[3]; self.r = self.ab | self.srcc
        elif op.startswith('v_'):
            self.kind = 'valu'
            self.dpp = any(m.startswith(('row_', 'quad_perm', 'wave_')) for m in mods)
            base = op.replace('_e32', '').replace('_e64', '')
            if base.startswith('v_cmp'):
                self.w = R[0]; self.r = set().union(*R[1:])
            elif base.startswith('v_permlane') and 'swap' in base:
                self.w = R[0] | R[1]; self.r = R[0] | R[1]; self.kind = 'permlane'
            elif base in ('v_readfirstlane_b32', 'v_readlane_b32'):
                self.w = R[0]; self.r = set().union(*R[1:]); self.kind = 'readlane'
            elif base in ('v_add_co_u32', 'v_addc_co_u32', 'v_sub_co_u32'):
                self.w = R[0] | R[1]; self.r = set().union(*R[2:])
            else:
                self.w = R[0]; self.r = set().union(*R[1:]) if len(R) > 1 else set()
                if base.startswith(('v_fmac', 'v_dot2c', 'v_pk_fmac')):
                    self.r |= R[0]
                if base == 'v_cndmask_b32' and len(ops) == 3:
                    self.r |= regs_of('vcc')
                if base in TRANS:
                    self.kind = 'trans'
                if base.startswith('v_dot'):
                    self.kind = 'dl'
        elif op.startswith(('buffer_', 'global_')):
            self.kind = 'vmem'
            lds = 'lds' in mods or '_lds_' in op
            if op in ('buffer_inv', 'buffer_wbl2'):
                pass
            elif lds:
                self.is_lds_dma = True; self.r = set().union(*R) | {('s', 'm0')}
            elif 'load' in op:
                self.w = R[0]; self.r = set().union(*R[1:])
            elif 'atomic' in op:
                self.r = set().union(*R)
                if 'sc0' in mods:
                    self.w = R[0]
            else:
                self.r = set().union(*R)
                if op.endswith(('x3', 'x4')):
                    self.wide_store = R[0] if op.startswith('buffer_') else R[1]
        elif op.startswith('ds_'):
            self.kind = 'ds'
            if 'read' in op or 'permute' in op or 'swizzle' in op:
                self.w = R[0]; self.r = set().union(*R[1:])
            else:
                self.r = set().union(*R)
        elif op.startswith('s_'):
            self.kind = 'salu'
            if op.startswith(('s_cbranch', 's_branch')):
                self.target = ops[0]
            elif op.startswith(('s_cmp', 's_waitcnt', 's_barrier', 's_endpgm', 's_sleep', 's_setprio', 's_bitcmp')):
                self.r = set().union(*R) if R else set()
            else:
                self.w = R[0] if R else set(); self.r = set().union(*R[1:]) if len(R) > 1 else set()
                if 'saveexec' in op:
                    self.w |= regs_of('exec')
        else:
            raise ValueError('unknown instruction: ' + text)


VALU_KINDS = ('valu', 'trans', 'dl', 'permlane', 'readlane')


def vg(s):
    return {x for x in s if x[0] in 'va'}


def sg(s):
    return {x for x in s if x[0] == 's'}


def need(p, c):
    n = 0
    pv = p.kind in VALU_KINDS
    cv = c.kind in VALU_KINDS
    if pv:
        pw = vg(p.w)
        if c.kind == 'mfma' and pw & c.r:
            n = max(n, 3 if p.kind == 'dl' else 2)
        if c.kind == 'permlane' and pw & c.r:
            n = max(n, 2)
        if c.kind == 'readlane' and pw & c.r:
            n = max(n, 1)
        if cv and c.dpp and pw & c.r:
            n = max(n, 2)
        if p.kind == 'trans' and (cv or c.kind == 'mfma') and c.kind != 'trans' and pw & c.r:
            n = max(n, 1)
        if p.kind == 'trans' and c.kind in ('vmem', 'ds') and pw & c.r:
            n = max(n, 1)
        if p.kind == 'dl' and pw & (c.r | c.w):
            if c.kind == 'dl' and c.op == p.op and not (pw & set().union(*[regs_of(o) for o in c.ops[1:3]])):
                pass
            else:
                n = max(n, 3)
        ps = sg(p.w)
        if ps:
            if cv and ps & c.r:
                n = max(n, 4 if c.kind == 'readlane' else 2)
            if c.kind == 'vmem' and ps & c.r:
                n = max(n, 5)
            if c.kind == 'salu' and ps & c.r:
                n = max(n, 1)
    if p.kind == 'mfma':
        big = 12 if p.passes == 8 else 8
        if c.kind == 'mfma':
            if p.w & c.ab:
                n = max(n, big)
            if p.w & c.srcc:
                if not (p.w == c.srcc and p.passes == c.passes):
                    n = max(n, big - 2)
            elif p.w & c.w:
                n = max(n, big - 2)
        elif (cv or c.kind in ('vmem', 'ds')) and p.w & (c.r | c.w):
            n = max(n, big)
        if cv and p.srcc & c.w:
            n = max(n, 7 if p.passes == 8 else 3)
        if c.kind in ('vmem', 'ds') and p.srcc & c.w:
            n = max(n, 7 if p.passes == 8 else 3)
    if p.kind == 'salu' and ('s', 'm0') in p.w and c.is_lds_dma:
        n = max(n, 1)
    if p.wide_store and p.wide_store & c.w and c.kind != 'salu':
        n = max(n, 2 if cv or c.kind == 'mfma' else 1)
    return n


class Asm:
    def __init__(self):
        self.lines = []
        self.uid = 0

    def __call__(self, s):
        for ln in s.split('\n'):
            ln = ln.strip()
            if ln:
                self.lines.append(ln)

    def label(self, base):
        self.uid += 1
        return f'L_{base}_{self.uid}'

    def pad(self, window=14):
        ins = [Ins(l) for l in self.lines]
        labels = {x.label: i for i, x in enumerate(ins) if x.label}
        jumps = {}
        for i, x in enumerate(ins):
            if x.target:
                jumps.setdefault(labels[x.target], []).append(i)
        extra = [0] * len(ins)

        def preds(i):
            out = []
            if i > 0 and ins[i - 1].op not in ('s_branch', 's_endpgm'):
                out.append(i - 1)
            out += jumps.get(i, [])
            return out

        total = 0
        for i, c in enumerate(ins):
            if c.kind in ('label', 'dir') or (c.kind == 'salu' and not c.r):
                continue
            req = 0
            stack = [(p, 0) for p in preds(i)]
            seen = {}
            while stack:
                k, d = stack.pop()
                if d >= window or seen.get(k, 99) <= d:
                    continue
                seen[k] = d
                p = ins[k]
                if p.kind not in ('label', 'dir'):
                    req = max(req, need(p, c) - d)
                nd = d + p.states + extra[k]
                for q in preds(k):
                    stack.append((q, nd))
            if req > 0:
                extra[i] = req
                total += req
        out = []
        for i, x in enumerate(ins):
            e = extra[i]
            while e > 0:
                k = min(e, 16)
                out.append(f's_nop {k - 1}')
                e -= k
            out.append(x.text)
        return out, total
```

```python
import sys, math, struct
sys.path.insert(0, 'gen')
from asmlib import Asm

NAME = 'interleave_layers__sliding_block__dense_activation_relu__prompt'
WS_EPOCH = 0
WS_XID = 0x1000
WS_FO, WS_FX1, WS_FH, WS_FX2 = 0x2000, 0x4000, 0x6000, 0x8000
WS_FKV = 0x10000
WS_ST1, WS_ST2 = 0x50000, 0x90000
WS_OF, WS_X1F, WS_XF, WS_HF = 0x100000, 0x2C0000, 0x480000, 0x640000
WS_KV = 0xD40000
WS_PROF = 0x1600000
WS_BYTES = 0x2000000
L_SLOT = 53248
L_STG = 102400
L_CS = 152576
L_CS1 = L_CS + 384
L_PART = L_CS + 1024
L_SCR = L_CS + 3072
LDS_BYTES = 163840
sX, sWQ, sWO, sW1, sW2, sOUT, sWS, sDBG = 4, 8, 12, 16, 20, 24, 28, 32
sRB, sJ, sW, sFAST, sTH, sFS, sTT = 36, 37, 38, 39, 40, 41, 42
sTAG = 44
sT = list(range(46, 58))
sONES = 58
sSPIN = 59
sM56 = 60
sHI = 62
sCM = 64
sSTAMP = 96
sTB = 98
sFT = 99
vLANE, vL16 = 0, 1
vT = list(range(2, 15))
vPROF = 15
vRES = 16
vWO = 32
vB = 56


def srd(n):
    return f's[{n}:{n + 3}]'


def vr(a, n):
    return f'v[{a}:{a + n - 1}]' if n > 1 else f'v{a}'


def ar(a, n):
    return f'a[{a}:{a + n - 1}]'


def f32(x):
    return '0x%08x' % struct.unpack('<I', struct.pack('<f', x))[0]


def wo_frag(i):
    return ar(224 + 4 * i, 4) if i < 8 else vr(vWO + 4 * (i - 8), 4)


def wo_half(i, e2):
    return ar(224 + 4 * i + 2 * e2, 2) if i < 8 else vr(vWO + 4 * (i - 8) + 2 * e2, 2)


class Gen:
    def __init__(self, stop=None, prof=False, force_slow=False):
        self.a = Asm()
        self.stop = stop
        self.prof = prof
        self.force_slow = force_slow
        self.nstamp = 0

    def stamp(self, name):
        if not self.prof:
            return
        a = self.a
        a(f's_memtime s[{sSTAMP}:{sSTAMP + 1}]\ns_waitcnt lgkmcnt(0)\nv_writelane_b32 v{vPROF}, s{sSTAMP}, {self.nstamp}  ; {name}')
        self.names.append(name)
        self.nstamp += 1

    def maybe_stop(self, tag):
        if self.stop == tag:
            self.a('s_waitcnt vmcnt(0) lgkmcnt(0)\ns_branch L_fin')

    def poll(self, voff, soff, mask, tmp):
        a = self.a
        lp, dn = a.label('poll'), a.label('polled')
        a(f's_mov_b64 exec, {mask}')
        a(f'{lp}:')
        a(f'buffer_load_dwordx2 {vr(tmp, 2)}, v{voff}, {srd(sWS)}, s{soff} offen sc1')
        a(f's_sub_u32 s{sSPIN}, s{sSPIN}, 1')
        a('s_cbranch_scc1 L_fin')
        a('s_waitcnt vmcnt(0)')
        a(f'v_cmp_ne_u64 vcc, s[{sTAG}:{sTAG + 1}], {vr(tmp, 2)}')
        a(f's_cbranch_vccnz {lp}')
        a('s_mov_b64 exec, -1')

    def flag(self, soff, always_sc1=False):
        a = self.a
        a('s_waitcnt vmcnt(0)')
        a(f'v_mov_b32 v{vT[0]}, s{sTAG}\nv_mov_b32 v{vT[1]}, s{sTAG + 1}\nv_mov_b32 v{vT[2]}, 0')
        a('s_mov_b64 exec, 1')
        self.stores([f'buffer_store_dwordx2 {vr(vT[0], 2)}, v{vT[2]}, {srd(sWS)}, s{soff} offen'], always_sc1)
        a('s_mov_b64 exec, -1')

    def stores(self, lst, always_sc1=False):
        a = self.a
        if always_sc1:
            for s in lst:
                a(s + ' sc1' if s.startswith('buffer_store') else s)
            return
        sl, dn = a.label('slow'), a.label('stored')
        a(f's_cmp_eq_u32 s{sFAST}, 0\ns_cbranch_scc1 {sl}')
        for s in lst:
            a(s)
        a(f's_branch {dn}\n{sl}:')
        for s in lst:
            a(s + ' sc1' if s.startswith('buffer_store') else s)
        a(f'{dn}:')

    def dma(self, sr, voff, gbase, gimm, lbase, limm, extra=''):
        a = self.a
        a(f's_add_u32 s{sT[11]}, s{gbase}, {gimm}')
        a(f's_add_u32 m0, s{lbase}, {limm}')
        a(f'buffer_load_dwordx4 v{voff}, {srd(sr)}, s{sT[11]} offen{extra} lds')

    def xhalf(self, op, x, tmp):
        a = self.a
        a(f'v_mov_b32 v{tmp}, v{x}\nv_permlane32_swap_b32 v{x}, v{tmp}\n{op} v{x}, v{x}, v{tmp}')

    def x16(self, op, x, tmp):
        a = self.a
        a(f'v_mov_b32 v{tmp}, v{x}\nv_permlane16_swap_b32 v{x}, v{tmp}\n{op} v{x}, v{x}, v{tmp}')

    def ln_finish(self, s, q, rs, nm):
        a = self.a
        a(f'v_mul_f32 v{s}, {f32(1 / 448)}, v{s}')
        a(f'v_mul_f32 v{q}, {f32(1 / 448)}, v{q}')
        a(f'v_fma_f32 v{q}, -v{s}, v{s}, v{q}')
        a(f'v_max_f32 v{q}, 0, v{q}')
        a(f'v_add_f32 v{q}, {f32(1e-5)}, v{q}')
        a(f'v_rsq_f32 v{rs}, v{q}')
        a(f'v_mul_f32 v{nm}, -v{s}, v{rs}' if False else f'v_mul_f32 v{nm}, v{s}, v{rs}')
        a(f'v_sub_f32 v{nm}, 0, v{nm}')

    def dma_wqkv(self):
        a = self.a
        v = vT[0]
        a(f'v_lshrrev_b32 v{v}, 2, v{vLANE}\nv_mul_u32_u24 v{v}, 2688, v{v}')
        a(f'v_and_b32 v{vT[1]}, 3, v{vLANE}\nv_lshl_add_u32 v{v}, v{vT[1]}, 4, v{v}')
        g, l = sT[0], sT[1]
        a(f's_and_b32 s{sT[2]}, s{sW}, 1\ns_add_u32 s{sT[2]}, s{sT[2]}, 1\ns_lshr_b32 s{sT[3]}, s{sW}, 1')
        a(f's_mul_i32 s{g}, s{sT[2]}, 896\ns_mul_i32 s{sT[4]}, s{sJ}, 56\ns_add_u32 s{g}, s{g}, s{sT[4]}')
        a(f's_mul_i32 s{sT[5]}, s{sT[3]}, {16 * 2688}\ns_add_u32 s{g}, s{g}, s{sT[5]}')
        a(f's_mul_i32 s{l}, s{sT[2]}, 28672\ns_lshl_b32 s{sT[3]}, s{sT[3]}, 10\ns_add_u32 s{l}, s{l}, s{sT[3]}')
        for i in range(14):
            self.dma(sWQ, v, g, i * 32 * 2688, l, i * 2048)
        a(f's_mul_i32 s{g}, s{sW}, {16 * 2688}\ns_add_u32 s{g}, s{g}, s{sT[4]}\ns_lshl_b32 s{l}, s{sW}, 10')
        for i in range(7):
            self.dma(sWQ, v, g, i * 64 * 2688, l, i * 4096)

    def dma_w1(self, part):
        a = self.a
        v = vT[0]
        a(f'v_mul_u32_u24 v{vT[1]}, 4682, v{vLANE}\nv_lshrrev_b32 v{vT[1]}, 16, v{vT[1]}')
        a(f'v_mul_u32_u24 v{v}, 14, v{vT[1]}\nv_sub_u32 v{v}, v{vLANE}, v{v}\nv_lshlrev_b32 v{v}, 4, v{v}')
        a(f'v_mul_u32_u24 v{vT[1]}, 3584, v{vT[1]}\nv_add_u32 v{v}, v{v}, v{vT[1]}')
        g, l = sT[0], sT[1]
        a(f's_mul_i32 s{g}, s{sW}, {4 * 3584}\ns_mul_i32 s{sT[2]}, s{sJ}, 224\ns_add_u32 s{g}, s{g}, s{sT[2]}')
        a(f's_mul_i32 s{l}, s{sW}, 896')
        a(f's_mov_b64 exec, s[{sM56}:{sM56 + 1}]')
        for u in range(14):
            i = 4 * (u + 14 * part)
            self.dma(sW1, v, g, i * 4 * 3584, l, i * 896)
        a('s_mov_b64 exec, -1')

    def dma_stage(self, sr, row0_mul, row0_add):
        a = self.a
        v = vT[0]
        a(f'v_mul_u32_u24 v{vT[1]}, 9363, v{vLANE}\nv_lshrrev_b32 v{vT[1]}, 16, v{vT[1]}')
        a(f'v_mul_u32_u24 v{v}, 7, v{vT[1]}\nv_sub_u32 v{v}, v{vLANE}, v{v}\nv_lshlrev_b32 v{v}, 4, v{v}')
        a(f'v_mul_u32_u24 v{vT[1]}, 896, v{vT[1]}\nv_add_u32 v{v}, v{v}, v{vT[1]}')
        g, l = sT[0], sT[1]
        a(f's_mul_i32 s{g}, s{sW}, {row0_mul * 896}\ns_mul_i32 s{sT[2]}, s{sFS}, 112\ns_add_u32 s{g}, s{g}, s{sT[2]}')
        a(f's_mul_i32 s{l}, s{sW}, 12544')
        a(f's_mov_b64 exec, s[{sM56}:{sM56 + 1}]')
        for i in range(14):
            self.dma(sr, v, g, (row0_add + 8 * i) * 896, l, L_STG + 896 * i)
        a('s_mov_b64 exec, -1')

    def stage_read(self, dst_half, natural):
        a = self.a
        v, v2 = vT[0], vT[1]
        a(f'v_bfe_u32 v{v}, v{vLANE}, 2, 2\nv_mul_u32_u24 v{v}, 112, v{v}')
        a(f'v_bfe_u32 v{vT[2]}, v{vLANE}, 4, 1\nv_lshl_add_u32 v{v}, v{vT[2]}, 5, v{v}')
        a(f'v_and_b32 v{vT[2]}, 3, v{vLANE}\nv_lshl_add_u32 v{v}, v{vT[2]}, 3, v{v}')
        a(f's_mul_i32 s{sT[0]}, s{sW}, 12544\ns_add_u32 s{sT[0]}, s{sT[0]}, {L_STG}')
        a(f'v_add_u32 v{v}, s{sT[0]}, v{v}')
        a(f'v_lshrrev_b32 v{vT[2]}, 5, v{vLANE}')
        a(f'v_mul_u32_u24 v{vT[3]}, {4 * 112}, v{vT[2]}')
        a(f'v_add_u32 v{v}, v{v}, v{vT[3]}\nv_add_u32 v{v2}, v{v}, v{vT[3]}')
        a(f's_lshl_b32 s{sT[0]}, s{sFT}, 6')
        a(f'v_add_u32 v{vT[4]}, s{sT[0]}, v{v}\nv_add_u32 v{vT[5]}, s{sT[0]}, v{v2}')
        a(f's_sub_u32 s{sT[0]}, 64, s{sT[0]}')
        a(f'v_add_u32 v{vT[6]}, s{sT[0]}, v{v}\nv_add_u32 v{vT[7]}, s{sT[0]}, v{v2}')
        n = 0
        for q in range(7):
            for bft in range(2):
                for e2 in range(2):
                    if natural or q == 6:
                        base, row = (vT[5], vT[7])[bft], 16 * q + 4 * e2
                    else:
                        base, row = (vT[4], vT[6])[bft], 32 * (q >> 1) + 16 * e2 + 8 * (q & 1)
                    if n >= 12:
                        a('s_waitcnt lgkmcnt(8)')
                        n = 8
                    a(f'ds_read_b64_tr_b16 {dst_half(q, bft, e2)}, v{base} offset:{row * 112}')
                    n += 1
        a('s_waitcnt lgkmcnt(0)')

    def entry(self):
        a = self.a
        a('L_code_start:')
        a(f's_getpc_b64 s[{sT[0]}:{sT[1]}]')
        a('s_cmp_ge_u32 s2, 256\ns_cbranch_scc1 L_end')
        for s, off in ((sX, 0), (sWQ, 8), (sWS, 64), (sWO, 16), (sW1, 32), (sW2, 40), (sOUT, 48), (sDBG, 56)):
            a(f's_load_dwordx2 s[{s}:{s + 1}], s[0:1], {off}')
        a(f'v_lshlrev_b32 v{vT[0]}, 7, v0')
        a(f's_mov_b32 s{sT[2]}, L_code_end-L_code_start-8')
        a(f'v_min_u32 v{vT[1]}, s{sT[2]}, v{vT[0]}')
        a(f'global_load_dword v{vT[3]}, v{vT[1]}, s[{sT[0]}:{sT[1]}]')
        a(f'v_add_u32 v{vT[0]}, 0x8000, v{vT[0]}\nv_min_u32 v{vT[2]}, s{sT[2]}, v{vT[0]}')
        a(f'global_load_dword v{vT[3]}, v{vT[2]}, s[{sT[0]}:{sT[1]}]')
        a(f'v_lshrrev_b32 v{vT[4]}, 6, v0\nv_and_b32 v{vLANE}, 63, v0\nv_readfirstlane_b32 s{sW}, v{vT[4]}')
        a(f'v_lshlrev_b32 v{vL16}, 4, v{vLANE}')
        if self.prof:
            a(f'v_mov_b32 v{vPROF}, 0')
        for s, n in ((sX, 1835008), (sWQ, 1204224), (sWS, WS_BYTES), (sWO, 401408), (sW1, 1605632), (sW2, 1605632),
                     (sOUT, 1835008), (sDBG, 256)):
            a(f's_mov_b32 s{s + 2}, {n}\ns_mov_b32 s{s + 3}, 0x20000')
        a(f's_and_b32 s{sRB}, s2, 7\ns_lshl_b32 s{sRB}, s{sRB}, 1\ns_lshr_b32 s{sJ}, s2, 7\ns_add_u32 s{sRB}, s{sRB}, s{sJ}')
        a(f's_lshr_b32 s{sJ}, s2, 3\ns_and_b32 s{sJ}, s{sJ}, 15')
        a(f's_lshr_b32 s{sTH}, s{sJ}, 3\ns_and_b32 s{sFS}, s{sJ}, 7')
        a(f's_lshl_b32 s{sTT}, s{sRB}, 2\ns_add_u32 s{sTT}, s{sTT}, s{sW}')
        a(f's_lshl_b32 s{sTB}, s{sRB}, 2\ns_lshl_b32 s{sT[3]}, s{sTH}, 1\ns_add_u32 s{sTB}, s{sTB}, s{sT[3]}')
        a(f's_lshr_b32 s{sT[3]}, s{sW}, 1\ns_add_u32 s{sTB}, s{sTB}, s{sT[3]}\ns_and_b32 s{sFT}, s{sW}, 1')
        a(f's_mov_b32 s{sONES}, 0x3f803f80\ns_mov_b32 s{sSPIN}, 0x100000')
        a(f's_mov_b32 s{sM56}, -1\ns_mov_b32 s{sM56 + 1}, 0x00ffffff\ns_mov_b32 s{sHI}, 0\ns_mov_b32 s{sHI + 1}, -1')
        a(f'v_and_b32 v{vT[4]}, 31, v{vLANE}\nv_mul_u32_u24 v{vT[4]}, 896, v{vT[4]}')
        a(f'v_lshrrev_b32 v{vT[5]}, 5, v{vLANE}\nv_lshl_add_u32 v{vT[6]}, v{vT[5]}, 4, v{vT[4]}')
        a(f's_mul_i32 s{sT[4]}, s{sTT}, {32 * 896}')
        a('s_waitcnt lgkmcnt(0)')
        self.stamp('karg')
        a(f's_load_dwordx2 s[{sTAG}:{sTAG + 1}], s[{sWS}:{sWS + 1}], {WS_EPOCH}')
        for ks in range(28):
            a(f'buffer_load_dwordx4 {vr(vB + 4 * ks, 4)}, v{vT[6]}, {srd(sX)}, s{sT[4]} offen offset:{ks * 32}')
        self.dma_wqkv()
        a(f'v_lshl_add_u32 v{vT[6]}, v{vT[5]}, 3, v{vT[4]}')
        a(f's_mul_i32 s{sT[4]}, s{sTB}, {32 * 896}\ns_mul_i32 s{sT[5]}, s{sFS}, 112\ns_add_u32 s{sT[4]}, s{sT[4]}, s{sT[5]}')
        a(f's_lshl_b32 s{sT[5]}, s{sFT}, 6\ns_add_u32 s{sT[4]}, s{sT[4]}, s{sT[5]}')
        for m in range(4):
            a(f'buffer_load_dwordx2 {vr(vRES + 8 + 2 * m, 2)}, v{vT[6]}, {srd(sX)}, s{sT[4]} offen offset:{16 * m}')
        a(f'v_and_b32 v{vT[4]}, 31, v{vLANE}\nv_lshlrev_b32 v{vT[5]}, 2, v{vT[5]}\nv_sub_u32 v{vT[4]}, v{vT[4]}, v{vT[5]}')
        for r in range(16):
            a(f'v_cmp_le_i32 s[{sCM + 2 * r}:{sCM + 2 * r + 1}], {(r & 3) + 8 * (r >> 2)}, v{vT[4]}')
        a('s_waitcnt lgkmcnt(0)')
        a(f's_add_u32 s{sTAG}, s{sTAG}, 1\ns_addc_u32 s{sTAG + 1}, s{sTAG + 1}, 0')
        a(f's_getreg_b32 s{sT[0]}, hwreg(HW_REG_XCC_ID, 0, 4)')
        sk = a.label('noxid')
        a(f's_cmp_lg_u32 s{sW}, 0\ns_cbranch_scc1 {sk}')
        a(f'v_mov_b32 v{vT[6]}, s{sTAG}\nv_mov_b32 v{vT[7]}, s{sTAG + 1}\nv_mov_b32 v{vT[8]}, s{sT[0]}\nv_mov_b32 v{vT[9]}, 0')
        a(f's_lshl_b32 s{sT[1]}, s{sRB}, 8\ns_lshl_b32 s{sT[2]}, s{sJ}, 4\ns_add_u32 s{sT[1]}, s{sT[1]}, s{sT[2]}')
        a(f's_add_u32 s{sT[1]}, s{sT[1]}, {WS_XID}\ns_mov_b64 exec, 1')
        a(f'buffer_store_dwordx4 {vr(vT[6], 4)}, v{vT[9]}, {srd(sWS)}, s{sT[1]} offen sc1')
        a('s_mov_b64 exec, -1')
        a(f'{sk}:')

    ACK, ACV, ACQ, AF = 168, 184, 200, 216
    vRS, vNM = 12, 13

    def tr_base_qkv(self, v):
        a = self.a
        a(f'v_lshrrev_b32 v{v}, 5, v{vLANE}\nv_lshlrev_b32 v{v}, 3, v{v}\nv_bfe_u32 v{vT[1]}, v{vLANE}, 2, 2')
        a(f'v_add_u32 v{v}, v{v}, v{vT[1]}\nv_lshlrev_b32 v{v}, 6, v{v}')
        a(f'v_bfe_u32 v{vT[1]}, v{vLANE}, 4, 1\nv_lshl_add_u32 v{v}, v{vT[1]}, 5, v{v}')
        a(f'v_and_b32 v{vT[1]}, 3, v{vLANE}\nv_lshl_add_u32 v{v}, v{vT[1]}, 3, v{v}')

    def kv_steps(self, ks0, ks1, vq, vkv, cs=None, vm=None):
        a = self.a
        AF = self.AF

        def rd(ks):
            sl = AF + 8 * (ks % 4)
            for sec in range(2):
                for e2 in range(2):
                    a(f'ds_read_b64_tr_b16 {vr(sl + 4 * sec + 2 * e2, 2)}, v{vkv} offset:{sec * 28672 + ks * 1024 + e2 * 256}')
        for ks in range(ks0, min(ks0 + 2, ks1)):
            rd(ks)
        for ks in range(ks0, ks1):
            if ks + 2 < ks1:
                rd(ks + 2)
            out = 4 * (min(ks + 2, ks1 - 1) - ks)
            w = f's_waitcnt lgkmcnt({out})'
            if vm is not None:
                w += f' vmcnt({vm(ks)})'
            a(w)
            sl = AF + 8 * (ks % 4)
            b = vr(vB + 4 * ks, 4)
            ck = '0' if ks == 0 else vr(self.ACK, 16)
            cv = '0' if ks == 0 else vr(self.ACV, 16)
            a(f'v_mfma_f32_32x32x16_bf16 {vr(self.ACK, 16)}, {vr(sl, 4)}, {b}, {ck}')
            if cs:
                for i in range(4):
                    a(f'v_dot2c_f32_bf16 v{cs[0] + (i & 1)}, s{sONES}, v{sl + i}')
            a(f'v_mfma_f32_32x32x16_bf16 {vr(self.ACV, 16)}, {b}, {vr(sl + 4, 4)}, {cv}')
            if cs:
                for i in range(4):
                    a(f'v_dot2c_f32_bf16 v{cs[1] + (i & 1)}, s{sONES}, v{sl + 4 + i}')

    def q_steps(self, ks0, ks1, vq, cs=None):
        a = self.a
        AF = self.AF

        def rd(ks):
            sl = AF + 4 * (ks % 8)
            for e2 in range(2):
                a(f'ds_read_b64_tr_b16 {vr(sl + 2 * e2, 2)}, v{vq} offset:{ks * 1024 + e2 * 256}')
        LA = 4
        for ks in range(ks0, min(ks0 + LA, ks1)):
            rd(ks)
        for ks in range(ks0, ks1):
            if ks + LA < ks1:
                rd(ks + LA)
            a(f's_waitcnt lgkmcnt({2 * (min(ks + LA, ks1 - 1) - ks)})')
            sl = AF + 4 * (ks % 8)
            c = '0' if ks == 0 else vr(self.ACQ, 16)
            a(f'v_mfma_f32_32x32x16_bf16 {vr(self.ACQ, 16)}, {vr(sl, 4)}, {vr(vB + 4 * ks, 4)}, {c}')
            if cs:
                for i in range(4):
                    a(f'v_dot2c_f32_bf16 v{cs + (i & 1)}, s{sONES}, v{sl + i}')

    CH = ((0, 8), (8, 16), (16, 24), (24, 28))

    def qkv(self, L):
        a = self.a
        vq, vkv = vT[12], vT[9]
        RS, NM = self.vRS, self.vNM
        AF = self.AF
        if L == 0:
            acc = AF
            for i in range(8):
                a(f'v_mov_b32 v{acc + i}, 0')
            for ks in range(28):
                if ks % 4 == 0:
                    a(f's_waitcnt vmcnt({25 + 28 - 4 - ks})')
                for i in range(4):
                    r = vB + 4 * ks + i
                    a(f'v_dot2c_f32_bf16 v{acc + i}, s{sONES}, v{r}\nv_dot2c_f32_bf16 v{acc + 4 + i}, v{r}, v{r}')
            for o in (0, 4):
                a(f'v_add_f32 v{acc + o}, v{acc + o}, v{acc + o + 1}\nv_add_f32 v{acc + o + 2}, v{acc + o + 2}, v{acc + o + 3}')
                a(f'v_add_f32 v{acc + o}, v{acc + o}, v{acc + o + 2}')
                self.xhalf('v_add_f32', acc + o, acc + o + 1)
            self.ln_finish(acc, acc + 4, RS, NM)
            self.stamp('x0stats')
            self.tr_base_qkv(vq)
            a(f'v_add_u32 v{vkv}, 28672, v{vq}')
            cs = AF + 32
            for i in range(6):
                a(f'v_mov_b32 v{cs + i}, 0')
            for c, (k0, k1) in enumerate(self.CH):
                a(f's_waitcnt vmcnt({14 - k1 // 2 + 7 + 4})\ns_barrier')
                alt, dn = a.label('kvcs'), a.label('kvdone')
                a(f's_cmp_eq_u32 s{sW}, {c}\ns_cbranch_scc1 {alt}')
                self.kv_steps(k0, k1, vq, vkv)
                a(f's_branch {dn}\n{alt}:')
                self.kv_steps(k0, k1, vq, vkv, cs=(cs, cs + 2))
                a(f'{dn}:')
            for o in (0, 2):
                a(f'v_add_f32 v{cs + o}, v{cs + o}, v{cs + o + 1}')
                self.xhalf('v_add_f32', cs + o, cs + o + 1)
            a(f'v_cndmask_b32 v{cs}, v{cs}, v{cs + 2}, s[{sHI}:{sHI + 1}]')
            a(f's_mul_i32 s{sT[0]}, s{sW}, 384\ns_add_u32 s{sT[0]}, s{sT[0]}, {L_PART + 128}')
            a(f'v_lshlrev_b32 v{vT[0]}, 2, v{vLANE}\nv_add_u32 v{vT[1]}, s{sT[0]}, v{vT[0]}')
            a(f'ds_write_b32 v{vT[1]}, v{cs}')
            a('s_waitcnt lgkmcnt(0) vmcnt(4)\ns_barrier')
            a(f'v_add_u32 v{vT[0]}, {L_PART + 128}, v{vT[0]}')
            for i in range(4):
                a(f'ds_read_b32 v{vT[2 + i]}, v{vT[0]} offset:{384 * i}')
            a('s_waitcnt lgkmcnt(0)')
            a(f'v_add_f32 v{vT[2]}, v{vT[2]}, v{vT[3]}\nv_add_f32 v{vT[4]}, v{vT[4]}, v{vT[5]}\nv_add_f32 v{vT[2]}, v{vT[2]}, v{vT[4]}')
            a(f'v_subrev_u32 v{vT[0]}, {L_PART - L_CS}, v{vT[0]}')
            a(f'ds_write_b32 v{vT[0]}, v{vT[2]}\ns_waitcnt lgkmcnt(0)')
        else:
            a(f'v_lshlrev_b32 v{vT[0]}, 3, v{vLANE}')
            a(f's_lshl_b32 s{sT[0]}, s{sTT}, 7\ns_add_u32 s{sT[0]}, s{sT[0]}, {WS_FX2}')
            self.tr_base_qkv(vq)
            a(f'v_add_u32 v{vkv}, 28672, v{vq}')
            a(f'v_and_b32 v{vT[4]}, 31, v{vLANE}\nv_lshlrev_b32 v{vT[4]}, 4, v{vT[4]}')
            a(f'v_lshrrev_b32 v{vT[5]}, 5, v{vLANE}\nv_lshl_add_u32 v{vT[4]}, v{vT[5]}, 11, v{vT[4]}')
            a(f's_mul_i32 s{sT[1]}, s{sTT}, 28672\ns_add_u32 s{sT[1]}, s{sT[1]}, {WS_XF}')
            a(f's_lshl_b32 s{sT[2]}, s{sTT}, 12\ns_add_u32 s{sT[2]}, s{sT[2]}, {WS_ST2}')
            self.poll(vT[0], sT[0], '0xffff', vT[2])
            a(f's_add_u32 s{sTAG}, s{sTAG}, 1\ns_addc_u32 s{sTAG + 1}, s{sTAG + 1}, 0')
            self.stamp('x2polled')
            for ks in range(28):
                if ks % 4 == 0 and ks:
                    a(f's_add_u32 s{sT[1]}, s{sT[1]}, 4096')
                a(f'buffer_load_dwordx4 {vr(vB + 4 * ks, 4)}, v{vL16}, {srd(sWS)}, s{sT[1]} offen offset:{(ks % 4) * 1024} sc1')
            st = self.ACQ
            for i in range(4):
                a(f'buffer_load_dwordx4 {vr(st + 4 * i, 4)}, v{vT[4]}, {srd(sWS)}, s{sT[2]} offen offset:{512 * i} sc1')
            self.kv_steps(0, 28, vq, vkv, vm=lambda ks: 27 - ks + 4)
            a('s_waitcnt vmcnt(0)')
            for o in (0, 1):
                a(f'v_add_f32 v{st + o}, v{st + o}, v{st + o + 2}\nv_add_f32 v{st + 4 + o}, v{st + 4 + o}, v{st + 6 + o}')
                a(f'v_add_f32 v{st + 8 + o}, v{st + 8 + o}, v{st + 10 + o}\nv_add_f32 v{st + 12 + o}, v{st + 12 + o}, v{st + 14 + o}')
                a(f'v_add_f32 v{st + o}, v{st + o}, v{st + 4 + o}\nv_add_f32 v{st + 8 + o}, v{st + 8 + o}, v{st + 12 + o}')
                a(f'v_add_f32 v{st + o}, v{st + o}, v{st + 8 + o}')
                self.xhalf('v_add_f32', st + o, st + o + 2)
            self.ln_finish(st, st + 1, RS, NM)
        self.stamp('kvloop')
        T = AF
        a(f's_lshl_b32 s{sT[0]}, s{sW}, 8\ns_add_u32 s{sT[0]}, s{sT[0]}, {L_SCR}')
        a(f'v_and_b32 v{vT[0]}, 31, v{vLANE}\nv_lshlrev_b32 v{vT[0]}, 2, v{vT[0]}')
        a(f'v_add_u32 v{vT[1]}, s{sT[0]}, v{vT[0]}')
        a(f'ds_write_b32 v{vT[1]}, v{RS}\nds_write_b32 v{vT[1]}, v{NM} offset:128')
        a(f'v_lshrrev_b32 v{vT[2]}, 5, v{vLANE}\nv_lshlrev_b32 v{vT[2]}, 4, v{vT[2]}')
        a(f'v_add_u32 v{vT[3]}, {L_CS}, v{vT[2]}\nv_add_u32 v{vT[2]}, s{sT[0]}, v{vT[2]}')
        a(f'v_add_u32 v{vT[0]}, {L_CS}, v{vT[0]}')
        for m in range(4):
            a(f'ds_read_b128 {vr(T + 4 * m, 4)}, v{vT[3]} offset:{128 + 32 * m}')
        a(f'ds_read_b32 v{vT[4]}, v{vT[0]} offset:256')
        for m in range(4):
            a(f'ds_read_b128 {vr(T + 16 + 4 * m, 4)}, v{vT[2]} offset:{128 + 32 * m}')
        a('s_waitcnt lgkmcnt(5)')
        for r in range(16):
            a(f'v_mul_f32 v{T + r}, v{T + r}, v{NM}\nv_fmac_f32 v{T + r}, v{self.ACK + r}, v{RS}')
        for p in range(8):
            a(f'v_cvt_pk_bf16_f32 v{self.ACK + p}, v{T + 2 * p}, v{T + 2 * p + 1}')
        for m in range(4):
            a(f'ds_read_b128 {vr(T + 4 * m, 4)}, v{vT[2]} offset:{32 * m}')
        for p in (6, 7):
            a(f'v_cndmask_b32 v{self.ACK + p}, v{self.ACK + p}, 0, s[{sHI}:{sHI + 1}]')
        a(f's_lshl_b32 s{sT[1]}, s{sJ}, 6\ns_add_u32 s{sT[1]}, s{sT[1]}, s{sTT}')
        a(f's_lshl_b32 s{sT[2]}, s{sT[1]}, 12\ns_add_u32 s{sT[2]}, s{sT[2]}, {WS_KV + L * 0x400000}')
        a(f's_lshl_b32 s{sT[1]}, s{sT[1]}, 7\ns_add_u32 s{sT[10]}, s{sT[1]}, {WS_FKV + L * 0x20000}')
        a(f's_lshl_b32 s{sT[3]}, s{sW}, 12\ns_add_u32 s{sT[3]}, s{sT[3]}, {L_SLOT + 8 * 4096}')
        a(f'v_add_u32 v{vT[5]}, s{sT[3]}, v{vL16}')
        for i in range(2):
            a(f'buffer_store_dwordx4 {vr(self.ACK + 4 * i, 4)}, v{vL16}, {srd(sWS)}, s{sT[2]} offen offset:{1024 * i} sc1')
            a(f'ds_write_b128 v{vT[5]}, {vr(self.ACK + 4 * i, 4)} offset:{1024 * i}')
        a('s_waitcnt lgkmcnt(6)')
        for r in range(16):
            a(f'v_mul_f32 v{T + 16 + r}, v{T + 16 + r}, v{vT[4]}')
        a(f'v_and_b32 v{vT[0]}, 31, v{vLANE}\nv_cmp_eq_u32 vcc, 28, v{vT[0]}\nv_mov_b32 v{vT[0]}, s{sONES}')
        a('s_waitcnt lgkmcnt(2)')
        for r in range(16):
            a(f'v_fmac_f32 v{T + 16 + r}, v{self.ACV + r}, v{T + r}')
        for p in range(8):
            a(f'v_cvt_pk_bf16_f32 v{self.ACV + p}, v{T + 16 + 2 * p}, v{T + 16 + 2 * p + 1}')
        for p in range(8):
            a(f'v_cndmask_b32 v{self.ACV + p}, v{self.ACV + p}, v{vT[0]}, vcc')
        for i in range(2):
            a(f'buffer_store_dwordx4 {vr(self.ACV + 4 * i, 4)}, v{vL16}, {srd(sWS)}, s{sT[2]} offen offset:{2048 + 1024 * i} sc1')
            a(f'ds_write_b128 v{vT[5]}, {vr(self.ACV + 4 * i, 4)} offset:{2048 + 1024 * i}')
        a('s_waitcnt lgkmcnt(0)')
        self.stamp('kvepi')
        if L == 0:
            cs = AF + 36
            a(f'v_mov_b32 v{cs}, 0\nv_mov_b32 v{cs + 1}, 0')
            for c, (k0, k1) in enumerate(self.CH):
                alt, dn = a.label('qcs'), a.label('qdone')
                a(f's_cmp_eq_u32 s{sW}, {c}\ns_cbranch_scc1 {alt}')
                self.q_steps(k0, k1, vq)
                a(f's_branch {dn}\n{alt}:')
                self.q_steps(k0, k1, vq, cs=cs)
                a(f'{dn}:')
            self.flag(sT[10], always_sc1=True)
            a(f'v_add_f32 v{cs}, v{cs}, v{cs + 1}')
            self.xhalf('v_add_f32', cs, cs + 1)
            a(f's_mul_i32 s{sT[0]}, s{sW}, 384\ns_add_u32 s{sT[0]}, s{sT[0]}, {L_PART}')
            a(f'v_and_b32 v{vT[0]}, 31, v{vLANE}\nv_lshlrev_b32 v{vT[0]}, 2, v{vT[0]}\nv_add_u32 v{vT[1]}, s{sT[0]}, v{vT[0]}')
            a(f'ds_write_b32 v{vT[1]}, v{cs}')
            a('s_waitcnt lgkmcnt(0)\ns_barrier')
            a(f'v_add_u32 v{vT[0]}, {L_PART}, v{vT[0]}')
            for i in range(4):
                a(f'ds_read_b32 v{vT[2 + i]}, v{vT[0]} offset:{384 * i}')
            a('s_waitcnt lgkmcnt(0)')
            a(f'v_add_f32 v{vT[2]}, v{vT[2]}, v{vT[3]}\nv_add_f32 v{vT[4]}, v{vT[4]}, v{vT[5]}\nv_add_f32 v{vT[2]}, v{vT[2]}, v{vT[4]}')
            a(f'v_subrev_u32 v{vT[0]}, {L_PART - L_CS}, v{vT[0]}')
            a(f'ds_write_b32 v{vT[0]}, v{vT[2]}\ns_waitcnt lgkmcnt(0)')
        else:
            self.q_steps(0, 28, vq)
            self.flag(sT[10], always_sc1=True)
            a('s_barrier')
        a(f'v_lshrrev_b32 v{vT[2]}, 5, v{vLANE}\nv_lshlrev_b32 v{vT[2]}, 4, v{vT[2]}\nv_add_u32 v{vT[3]}, {L_CS}, v{vT[2]}')
        for m in range(4):
            a(f'ds_read_b128 {vr(T + 4 * m, 4)}, v{vT[3]} offset:{32 * m}')
        c2 = f32(28 ** -0.5 * math.log2(math.e))
        a(f'v_mul_f32 v{RS}, {c2}, v{RS}\nv_mul_f32 v{NM}, {c2}, v{NM}')
        if L == 0:
            self.dma_stage(sWO, 112, 0)
        self.dma_w1(0)
        a('s_waitcnt lgkmcnt(0)')
        for r in range(16):
            a(f'v_mul_f32 v{T + r}, v{T + r}, v{NM}\nv_fmac_f32 v{T + r}, v{self.ACQ + r}, v{RS}')
        for p in range(8):
            a(f'v_cvt_pk_bf16_f32 v{self.aQ + p}, v{T + 2 * p}, v{T + 2 * p + 1}')
        for p in (6, 7):
            a(f'v_cndmask_b32 v{self.aQ + p}, v{self.aQ + p}, 0, s[{sHI}:{sHI + 1}]')
        self.stamp('qdone')

    aQ, aO, aNM, aS, aK, aV, aP, aM, aAD = 56, 64, 80, (96, 112), (128, 136), (144, 152), (160, 168), 176, 177

    def segment(self, first, sStart, stride, sCnt, sMasked):
        a = self.a
        Q, O, NMB, S, K, V, P, M, AD = self.aQ, self.aO, self.aNM, self.aS, self.aK, self.aV, self.aP, self.aM, self.aAD
        big = vT[0]
        cnt = sT[9]

        def rdk(b, off):
            a(f'ds_read_b128 {vr(K[b], 4)}, v{AD} offset:{off}\nds_read_b128 {vr(K[b] + 4, 4)}, v{AD} offset:{off + 1024}')

        def rdv(b, off):
            a(f'ds_read_b128 {vr(V[b], 4)}, v{AD} offset:{off + 2048}\nds_read_b128 {vr(V[b] + 4, 4)}, v{AD} offset:{off + 3072}')

        def qk(b, c):
            a(f'v_mfma_f32_32x32x16_bf16 {vr(S[b], 16)}, {vr(K[b], 4)}, {vr(Q, 4)}, {c}')
            a(f'v_mfma_f32_32x32x16_bf16 {vr(S[b], 16)}, {vr(K[b] + 4, 4)}, {vr(Q + 4, 4)}, {vr(S[b], 16)}')

        def mask(b, fill):
            sk = a.label('nomask')
            if sMasked is not None:
                a(f's_cmp_eq_u32 s{sMasked}, 0\ns_cbranch_scc1 {sk}')
            for r in range(16):
                m = f's[{sCM + 2 * r}:{sCM + 2 * r + 1}]'
                if first:
                    a(f'v_cndmask_b32 v{S[b] + r}, {fill}, v{S[b] + r}, {m}')
                else:
                    a(f'v_cndmask_b32 v{S[b] + r}, v{S[b] + r}, {fill}, {m}')
            a(f'{sk}:')

        B0 = 8192 if stride < 0 else 0

        def setad():
            a(f'v_add_u32 v{AD}, s{sStart}, v{vL16}')
            if B0:
                a(f'v_subrev_u32 v{AD}, {B0}, v{AD}')

        def adv():
            a(f'v_add_u32 v{AD}, {stride & 0xffffffff}, v{AD}')

        setad()
        rdk(0, B0)
        rdk(1, B0 + stride)
        a(f'v_mov_b32 v{big}, {f32(-1e30)}')
        if first:
            a(f'v_mov_b32 v{M}, v{big}')
        else:
            a(f'v_mov_b32 v{M + 2}, v{M}')
        a(f's_mov_b32 s{cnt}, s{sCnt}')
        a('s_waitcnt lgkmcnt(2)')
        qk(0, '0')
        lp, ex = a.label('p1'), a.label('p1x')

        def ph1(cur, masked):
            nx = 1 - cur
            a('s_waitcnt lgkmcnt(0)')
            qk(nx, '0')
            rdk(cur, B0 + 2 * stride)
            adv()
            if masked:
                mask(cur, f'v{big}')
            for i in range(8):
                a(f'v_max3_f32 v{M}, v{S[cur] + 2 * i}, v{S[cur] + 2 * i + 1}, v{M}')
            a(f's_sub_u32 s{cnt}, s{cnt}, 1\ns_cmp_eq_u32 s{cnt}, 0')
        ph1(0, True)
        a(f's_cbranch_scc1 {ex}\n{lp}:')
        ph1(1, False)
        a(f's_cbranch_scc1 {ex}')
        ph1(0, False)
        a(f's_cbranch_scc0 {lp}\n{ex}:')
        a('s_waitcnt lgkmcnt(0)')
        setad()
        rdk(0, B0)
        rdk(1, B0 + stride)
        rdv(0, B0)
        self.xhalf('v_max_f32', M, M + 3)
        if not first:
            a(f'v_sub_f32 v{M + 2}, v{M + 2}, v{M}\nv_exp_f32 v{M + 2}, v{M + 2}')
        for r in range(16):
            a(f'v_sub_f32 v{NMB + r}, 0, v{M}')
        if not first:
            for r in range(16):
                a(f'v_mul_f32 v{O + r}, v{O + r}, v{M + 2}')
        a(f's_mov_b32 s{cnt}, s{sCnt}')
        a('s_waitcnt lgkmcnt(4)')
        qk(0, vr(NMB, 16))
        lp, ex = a.label('p2'), a.label('p2x')

        def ph2(cur, masked):
            nx = 1 - cur
            a('s_waitcnt lgkmcnt(2)')
            qk(nx, vr(NMB, 16))
            rdk(cur, B0 + 2 * stride)
            rdv(nx, B0 + stride)
            adv()
            for r in range(16):
                a(f'v_exp_f32 v{S[cur] + r}, v{S[cur] + r}')
            if masked:
                mask(cur, '0')
            for p in range(8):
                a(f'v_cvt_pk_bf16_f32 v{P[cur] + p}, v{S[cur] + 2 * p}, v{S[cur] + 2 * p + 1}')
            a(f's_sub_u32 s{cnt}, s{cnt}, 1\ns_waitcnt lgkmcnt(4)\ns_cmp_eq_u32 s{cnt}, 0')
            c = '0' if (masked and first) else vr(O, 16)
            a(f'v_mfma_f32_32x32x16_bf16 {vr(O, 16)}, {vr(V[cur], 4)}, {vr(P[cur], 4)}, {c}')
            a(f'v_mfma_f32_32x32x16_bf16 {vr(O, 16)}, {vr(V[cur] + 4, 4)}, {vr(P[cur] + 4, 4)}, {vr(O, 16)}')
        ph2(0, True)
        a(f's_cbranch_scc1 {ex}\n{lp}:')
        ph2(1, False)
        a(f's_cbranch_scc1 {ex}')
        ph2(0, False)
        a(f's_cbranch_scc0 {lp}\n{ex}:')
        a('s_waitcnt lgkmcnt(0)')

    def attention(self, L):
        a = self.a
        O = self.aO
        a(f's_lshl_b32 s{sT[6]}, s{sW}, 12\ns_add_u32 s{sT[6]}, s{sT[6]}, {L_SLOT + 8 * 4096}\ns_add_u32 s{sT[7]}, s{sW}, 1')
        self.segment(True, sT[6], -4096, sT[7], None)
        self.stamp('segA')
        if L == 0:
            a('s_waitcnt vmcnt(14)')
            for p in range(8):
                src = vRES + 8 + p
                a(f'v_lshlrev_b32 v{vRES + 2 * p}, 16, v{src}' if 2 * p != 8 + p else '')
                if 2 * p + 1 == 8 + p:
                    a(f'v_and_b32 v{src}, 0xffff0000, v{src}')
                else:
                    a(f'v_and_b32 v{vRES + 2 * p + 1}, 0xffff0000, v{src}')
            self.stage_read(lambda q, b, e2: wo_half(2 * q + b, e2), True)
            a(f's_lshl_b32 s{sT[0]}, s{sRB}, 8\ns_add_u32 s{sT[0]}, s{sT[0]}, {WS_XID}')
            self.poll(vL16, sT[0], '0xffff', vT[2])
            a('s_mov_b64 exec, 0xffff')
            a(f'buffer_load_dword v{vT[2]}, v{vL16}, {srd(sWS)}, s{sT[0]} offen offset:8 sc1')
            a(f's_getreg_b32 s{sT[1]}, hwreg(HW_REG_XCC_ID, 0, 4)')
            a(f's_waitcnt vmcnt(0)\nv_cmp_ne_u32 vcc, s{sT[1]}, v{vT[2]}\ns_mov_b64 exec, -1')
            a(f's_cmp_eq_u64 vcc, 0\ns_cselect_b32 s{sFAST}, {0 if self.force_slow else 1}, 0')
        sk = a.label('nohalo')
        a(f's_lshl_b32 s{sT[0]}, s{sRB}, 2\ns_lshl_b32 s{sT[1]}, s{sW}, 1\ns_add_u32 s{sT[0]}, s{sT[0]}, s{sT[1]}')
        a(f's_cmp_lt_u32 s{sT[0]}, 8\ns_cbranch_scc1 {sk}')
        a(f's_lshl_b32 s{sT[2]}, s{sJ}, 6\ns_add_u32 s{sT[0]}, s{sT[0]}, s{sT[2]}\ns_sub_u32 s{sT[0]}, s{sT[0]}, 8')
        a(f's_lshl_b32 s{sT[2]}, s{sT[0]}, 7\ns_add_u32 s{sT[2]}, s{sT[2]}, {WS_FKV + L * 0x20000}')
        a(f's_lshl_b32 s{sT[0]}, s{sT[0]}, 12\ns_add_u32 s{sT[0]}, s{sT[0]}, {WS_KV + L * 0x400000}')
        a(f's_lshl_b32 s{sT[1]}, s{sW}, 13\ns_add_u32 s{sT[1]}, s{sT[1]}, {L_SLOT}')
        a(f'v_lshlrev_b32 v{vT[0]}, 7, v{vLANE}')
        self.poll(vT[0], sT[2], '3', vT[2])
        self.stamp('halopolled')
        for i in range(8):
            self.dma(sWS, vL16, sT[0], 1024 * i, sT[1], 1024 * i, ' sc1')
        a(f'{sk}:')
        a('s_waitcnt vmcnt(0)\ns_barrier')
        self.stamp('halo')
        sk = a.label('nosegb')
        a(f's_cmp_eq_u32 s{sRB}, 0\ns_cbranch_scc1 {sk}')
        a(f's_cmp_ge_u32 s{sRB}, 2\ns_cselect_b32 s{sT[8]}, 1, 0\ns_cselect_b32 s{sT[6]}, s{sW}, 4')
        a(f's_sub_u32 s{sT[7]}, 8, s{sT[6]}\ns_lshl_b32 s{sT[6]}, s{sT[6]}, 12\ns_add_u32 s{sT[6]}, s{sT[6]}, {L_SLOT}')
        self.segment(False, sT[6], 4096, sT[7], sT[8])
        a(f'{sk}:')
        t = vT[0]
        a(f's_mul_i32 s{sT[0]}, s{sJ}, 7\nv_lshrrev_b32 v{vT[2]}, 5, v{vLANE}\nv_add_u32 v{vT[2]}, s{sT[0]}, v{vT[2]}')
        a(f'v_and_b32 v{vT[3]}, 1, v{vT[2]}\nv_lshrrev_b32 v{vT[2]}, 1, v{vT[2]}\nv_lshlrev_b32 v{vT[2]}, 9, v{vT[2]}')
        a(f'v_lshl_add_u32 v{vT[2]}, v{vT[3]}, 3, v{vT[2]}\nv_and_b32 v{vT[3]}, 31, v{vLANE}\nv_lshl_add_u32 v{vT[2]}, v{vT[3]}, 4, v{vT[2]}')
        a(f's_mul_i32 s{sT[0]}, s{sTT}, 28672\ns_add_u32 s{sT[0]}, s{sT[0]}, {WS_OF}')
        a(f's_lshl_b32 s{sT[1]}, s{sTT}, 7\ns_lshl_b32 s{sT[2]}, s{sJ}, 3\ns_add_u32 s{sT[1]}, s{sT[1]}, s{sT[2]}\ns_add_u32 s{sT[1]}, s{sT[1]}, {WS_FO}')
        a(f'v_rcp_f32 v{t}, v{O + 12}')
        a(f'v_mov_b32 v{vT[1]}, v{t}\nv_permlane32_swap_b32 v{vT[1]}, v{t}')
        for r in range(16):
            a(f'v_mul_f32 v{O + r}, v{O + r}, v{t}')
        for p in range(8):
            a(f'v_cvt_pk_bf16_f32 v{O + p}, v{O + 2 * p}, v{O + 2 * p + 1}')
        st = [f'buffer_store_dwordx2 {vr(O + 2 * m, 2)}, v{vT[2]}, {srd(sWS)}, s{sT[0]} offen offset:{512 * m}' for m in range(4)]
        self.stores(st[:3] + ['s_mov_b32 exec_hi, 0', st[3], 's_mov_b32 exec_hi, -1'])
        self.flag(sT[1])
        self.stamp('attn')
        a('s_barrier')
        self.dma_w1(1)

    RACC = 56

    def red_write(self, blocks):
        a = self.a
        for b in blocks:
            a(f's_xor_b32 s{sT[0]}, s{sW}, {b}\ns_mul_i32 s{sT[0]}, s{sT[0]}, 12544\ns_add_u32 s{sT[0]}, s{sT[0]}, {L_STG + 4096 * (b - 1)}')
            a(f'v_add_u32 v{vT[0]}, s{sT[0]}, v{vL16}')
            for q in range(4):
                a(f'ds_write_b128 v{vT[0]}, {vr(self.RACC + 16 * b + 4 * q, 4)} offset:{1024 * q}')

    def red_tail(self, kind):
        a = self.a
        R = self.RACC
        self.red_write([1])
        a('s_waitcnt lgkmcnt(0)\ns_barrier')
        a(f's_mul_i32 s{sT[0]}, s{sW}, 12544\ns_add_u32 s{sT[0]}, s{sT[0]}, {L_STG}\nv_add_u32 v{vT[0]}, s{sT[0]}, v{vL16}')
        for i in (4, 5, 6, 7, 8, 9, 10, 11, 0, 1, 2, 3):
            a(f'ds_read_b128 {vr(R + 16 + 4 * i, 4)}, v{vT[0]} offset:{1024 * i}')
        t, h = vT[1], vT[2]
        a(f'v_and_b32 v{t}, 31, v{vLANE}\nv_lshrrev_b32 v{h}, 5, v{vLANE}')
        a(f's_mul_i32 s{sT[1]}, s{sFS}, 7\ns_lshl_b32 s{sT[2]}, s{sFT}, 2\ns_add_u32 s{sT[1]}, s{sT[1]}, s{sT[2]}')
        A0, A1 = vT[3], vT[4]
        if kind == 'x1':
            a(f'v_lshrrev_b32 v{A0}, 4, v{t}\nv_mul_u32_u24 v{A0}, 14336, v{A0}\nv_and_b32 v{A1}, 15, v{t}\nv_lshl_add_u32 v{A0}, v{A1}, 4, v{A0}')
            a(f's_and_b32 s{sT[2]}, s{sT[1]}, 1\nv_xor_b32 v{A1}, s{sT[2]}, v{h}\nv_lshl_add_u32 v{A0}, v{A1}, 3, v{A0}\nv_xor_b32 v{A1}, 8, v{A0}')
            a(f's_lshl_b32 s{sT[1]}, s{sT[1]}, 8\ns_mul_i32 s{sT[2]}, s{sTB}, 28672\ns_add_u32 s{sT[1]}, s{sT[1]}, s{sT[2]}\ns_add_u32 s{sT[1]}, s{sT[1]}, {WS_X1F}')
            addr = lambda m: (A1 if m & 1 else A0, 256 * m)
            sr = sWS
        elif kind == 'x2':
            a(f'v_lshlrev_b32 v{A0}, 4, v{t}\nv_lshl_add_u32 v{A0}, v{h}, 3, v{A0}')
            a(f's_lshl_b32 s{sT[1]}, s{sT[1]}, 9\ns_mul_i32 s{sT[2]}, s{sTB}, 28672\ns_add_u32 s{sT[1]}, s{sT[1]}, s{sT[2]}\ns_add_u32 s{sT[1]}, s{sT[1]}, {WS_XF}')
            addr = lambda m: (A0, 512 * m)
            sr = sWS
        else:
            a(f'v_mul_u32_u24 v{A0}, 896, v{t}\nv_lshl_add_u32 v{A0}, v{h}, 3, v{A0}')
            a(f's_lshl_b32 s{sT[1]}, s{sT[1]}, 4\ns_mul_i32 s{sT[2]}, s{sTB}, 28672\ns_add_u32 s{sT[1]}, s{sT[1]}, s{sT[2]}')
            addr = lambda m: (A0, 16 * m)
            sr = sOUT
        for r in range(16):
            a(f'v_add_f32 v{R + r}, v{R + r}, v{vRES + r}')
        for k, blk in enumerate((2, 3, 1)):
            a(f's_waitcnt lgkmcnt({8 - 4 * k})')
            for r in range(16):
                a(f'v_add_f32 v{R + r}, v{R + r}, v{R + 16 * blk + r}')
        for p in range(8):
            a(f'v_cvt_pk_bf16_f32 v{R + 16 + p}, v{R + 2 * p}, v{R + 2 * p + 1}')
        PK = R + 16
        st = []
        for m in range(4):
            v, off = addr(m)
            st.append(f'buffer_store_dwordx2 {vr(PK + 2 * m, 2)}, v{v}, {srd(sr)}, s{sT[1]} offen offset:{off}')
        a(f's_sub_u32 s{sT[4]}, s{sFT}, 1\ns_mov_b32 s{sT[5]}, s{sT[4]}')
        st = st[:3] + [f's_mov_b64 exec, s[{sT[4]}:{sT[5]}]', st[3], 's_mov_b64 exec, -1']
        if kind == 'out':
            for s in st:
                a(s)
            return
        flagb, stb = (WS_FX1, WS_ST1) if kind == 'x1' else (WS_FX2, WS_ST2)
        s0, q0 = vT[5], vT[6]
        a(f'v_and_b32 v{PK + 8}, s{sT[4]}, v{PK + 6}\nv_and_b32 v{PK + 9}, s{sT[4]}, v{PK + 7}')
        a(f'v_mov_b32 v{s0}, 0\nv_mov_b32 v{q0}, 0\nv_mov_b32 v{vT[7]}, 0\nv_mov_b32 v{vT[8]}, 0')
        for p in range(8):
            src = PK + p if p < 6 else PK + 2 + p
            a(f'v_dot2c_f32_bf16 v{(s0, vT[7])[p & 1]}, s{sONES}, v{src}\nv_dot2c_f32_bf16 v{(q0, vT[8])[p & 1]}, v{src}, v{src}')
        a(f'v_add_f32 v{s0}, v{s0}, v{vT[7]}\nv_add_f32 v{q0}, v{q0}, v{vT[8]}')
        self.xhalf('v_add_f32', s0, vT[7])
        self.xhalf('v_add_f32', q0, vT[8])
        a(f'v_mov_b32 v{PK + 10}, v{s0}\nv_mov_b32 v{PK + 11}, v{q0}')
        a(f'v_lshlrev_b32 v{t}, 4, v{t}')
        a(f's_lshl_b32 s{sT[2]}, s{sTB}, 12\ns_lshl_b32 s{sT[3]}, s{sFS}, 9\ns_add_u32 s{sT[2]}, s{sT[2]}, s{sT[3]}')
        a(f's_lshl_b32 s{sT[3]}, s{sFT}, 3\ns_add_u32 s{sT[2]}, s{sT[2]}, s{sT[3]}\ns_add_u32 s{sT[2]}, s{sT[2]}, {stb}')
        st += ['s_mov_b32 exec_hi, 0', f'buffer_store_dwordx2 {vr(PK + 10, 2)}, v{t}, {srd(sWS)}, s{sT[2]} offen', 's_mov_b32 exec_hi, -1']
        self.stores(st)
        for p in range(8):
            a(f'v_lshlrev_b32 v{vRES + 2 * p}, 16, v{PK + p}\nv_and_b32 v{vRES + 2 * p + 1}, 0xffff0000, v{PK + p}')
        a(f's_lshl_b32 s{sT[1]}, s{sTB}, 7\ns_lshl_b32 s{sT[2]}, s{sFS}, 4\ns_add_u32 s{sT[1]}, s{sT[1]}, s{sT[2]}')
        a(f's_lshl_b32 s{sT[2]}, s{sFT}, 3\ns_add_u32 s{sT[1]}, s{sT[1]}, s{sT[2]}\ns_add_u32 s{sT[1]}, s{sT[1]}, {flagb}')
        self.flag(sT[1])

    def poll8(self, flagb):
        a = self.a
        a(f'v_and_b32 v{vT[0]}, 3, v{vLANE}\nv_lshlrev_b32 v{vT[0]}, 3, v{vT[0]}\nv_bfe_u32 v{vT[1]}, v{vLANE}, 2, 1\nv_lshl_add_u32 v{vT[0]}, v{vT[1]}, 7, v{vT[0]}')
        a(f's_andn2_b32 s{sT[0]}, s{sTB}, 1\ns_lshl_b32 s{sT[0]}, s{sT[0]}, 7\ns_lshl_b32 s{sT[1]}, s{sW}, 5\ns_add_u32 s{sT[0]}, s{sT[0]}, s{sT[1]}')
        a(f's_add_u32 s{sT[0]}, s{sT[0]}, {flagb}')
        self.poll(vT[0], sT[0], '0xff', vT[2])

    def wo(self, L):
        a = self.a
        R = self.RACC
        BF = 120
        a(f's_xor_b32 s{sT[6]}, s{sTB}, 1\ns_mul_i32 s{sT[6]}, s{sT[6]}, 28672\ns_mul_i32 s{sT[7]}, s{sTB}, 28672')
        a(f's_mul_i32 s{sT[8]}, s{sW}, 7168\ns_add_u32 s{sT[8]}, s{sT[8]}, {WS_OF}')
        a(f's_add_u32 s{sT[6]}, s{sT[6]}, s{sT[8]}\ns_add_u32 s{sT[7]}, s{sT[7]}, s{sT[8]}')
        self.poll8(WS_FO)
        self.stamp('opolled')
        for half in range(2):
            s = sT[6 + half]
            for ks in range(7):
                if ks == 4:
                    a(f's_add_u32 s{s}, s{s}, 4096')
                a(f'buffer_load_dwordx4 {vr(BF + 28 * half + 4 * ks, 4)}, v{vL16}, {srd(sWS)}, s{s} offen offset:{(ks % 4) * 1024} sc1')
        for half in range(2):
            for ks in range(7):
                a(f's_waitcnt vmcnt({13 - 7 * half - ks})')
                for bft in range(2):
                    blk = R + 16 * (bft + (2 if half == 0 else 0))
                    c = '0' if ks == 0 else vr(blk, 16)
                    a(f'v_mfma_f32_32x32x16_bf16 {vr(blk, 16)}, {wo_frag(2 * ks + bft)}, {vr(BF + 28 * half + 4 * ks, 4)}, {c}')
                if half == 1 and ks == 1:
                    self.red_write([2])
                if half == 1 and ks == 3:
                    self.red_write([3])
        self.red_tail('x1')
        self.stamp('wo')

    def w2_read(self, c):
        self.stage_read(lambda q, b, e2: ar(((7 * c + q) * 2 + b) * 4 + 2 * e2, 2), False)

    def ffn1(self, L):
        a = self.a
        ACC, AF = 168, 224
        b0, b1 = vT[9], vT[10]
        a(f'v_lshrrev_b32 v{vT[0]}, 4, v{vLANE}\nv_lshlrev_b32 v{b0}, 3, v{vT[0]}\nv_bfe_u32 v{vT[1]}, v{vLANE}, 2, 2\nv_add_u32 v{b0}, v{b0}, v{vT[1]}')
        a(f'v_and_b32 v{vT[0]}, 1, v{vT[0]}\nv_lshl_add_u32 v{b0}, v{vT[0]}, 2, v{b0}\nv_xor_b32 v{b1}, 4, v{b0}')
        a(f'v_and_b32 v{vT[0]}, 3, v{vLANE}\nv_lshlrev_b32 v{vT[0]}, 3, v{vT[0]}')
        a(f'v_mul_u32_u24 v{b0}, 224, v{b0}\nv_mul_u32_u24 v{b1}, 224, v{b1}\nv_add_u32 v{b0}, v{b0}, v{vT[0]}\nv_add_u32 v{b1}, v{b1}, v{vT[0]}')
        b2, b3 = vT[11], vT[12]
        a(f'v_add_u32 v{b2}, {7 * 7168}, v{b0}\nv_add_u32 v{b3}, {7 * 7168}, v{b1}')

        def rd(dst, s, n):
            lo, hi = (b0, b1) if s < 7 else (b2, b3)
            off = (s % 7) * 7168 + 32 * n
            a(f'ds_read_b64_tr_b16 {vr(dst, 2)}, v{lo} offset:{off}\nds_read_b64_tr_b16 {vr(dst + 2, 2)}, v{hi} offset:{off}')
        if L == 0:
            self.dma_stage(sW2, 448, 0)
            on = ACC + 8
            for i in range(4):
                a(f'v_mov_b32 v{on + i}, s{sONES}')
            a(f's_lshl_b32 s{sT[0]}, s{sW}, 5\ns_add_u32 s{sT[1]}, s{sW}, 4\ns_min_u32 s{sT[1]}, s{sT[1]}, 6\ns_lshl_b32 s{sT[1]}, s{sT[1]}, 5')
            sv = [vB + i for i in range(8)]
            for k in range(2):
                for i, b in enumerate((b0, b1, b2, b3)):
                    a(f'v_add_u32 v{sv[4 * k + i]}, s{sT[k]}, v{b}')
            for s in range(14):
                for k in range(2):
                    d = AF + 8 * (s % 4) + 4 * k
                    lo, hi = (sv[4 * k], sv[4 * k + 1]) if s < 7 else (sv[4 * k + 2], sv[4 * k + 3])
                    a(f'ds_read_b64_tr_b16 {vr(d, 2)}, v{lo} offset:{(s % 7) * 7168}\nds_read_b64_tr_b16 {vr(d + 2, 2)}, v{hi} offset:{(s % 7) * 7168}')
                for s2 in ([s - 2] if s >= 2 else []) + ([12, 13] if s == 13 else []):
                    a(f's_waitcnt lgkmcnt({4 * (s - s2)})')
                    for k in range(2):
                        c = '0' if s2 == 0 else vr(ACC + 4 * k, 4)
                        a(f'v_mfma_f32_16x16x32_bf16 {vr(ACC + 4 * k, 4)}, {vr(AF + 8 * (s2 % 4) + 4 * k, 4)}, {vr(on, 4)}, {c}')
            a(f'v_and_b32 v{vT[0]}, 48, v{vLANE}\nv_add_u32 v{vT[0]}, {L_CS1}, v{vT[0]}')
            for k in range(2):
                a(f's_lshl_b32 s{sT[k]}, s{sT[k]}, 1\nv_add_u32 v{vT[1 + k]}, s{sT[k]}, v{vT[0]}')
                a(f'ds_write_b128 v{vT[1 + k]}, {vr(ACC + 4 * k, 4)}')
            a('s_waitcnt lgkmcnt(0)')
        a(f'v_lshlrev_b32 v{vT[0]}, 3, v{vLANE}')
        a(f's_lshl_b32 s{sT[0]}, s{sTT}, 7\ns_add_u32 s{sT[0]}, s{sT[0]}, {WS_FX1}')
        a(f's_mul_i32 s{sT[1]}, s{sTT}, 28672\ns_add_u32 s{sT[1]}, s{sT[1]}, {WS_X1F}\ns_add_u32 s{sT[3]}, s{sT[1]}, 14336')
        a(f's_lshl_b32 s{sT[2]}, s{sTT}, 12\ns_add_u32 s{sT[2]}, s{sT[2]}, {WS_ST1}')
        a(f'v_and_b32 v{vT[4]}, 15, v{vLANE}\nv_lshlrev_b32 v{vT[4]}, 4, v{vT[4]}\nv_lshrrev_b32 v{vT[5]}, 4, v{vLANE}\nv_lshl_add_u32 v{vT[4]}, v{vT[5]}, 10, v{vT[4]}')
        self.poll(vT[0], sT[0], '0xffff', vT[2])
        self.stamp('x1polled')
        for s in range(14):
            if s % 4 == 0 and s:
                a(f's_add_u32 s{sT[1]}, s{sT[1]}, 4096\ns_add_u32 s{sT[3]}, s{sT[3]}, 4096')
            for t in range(2):
                a(f'buffer_load_dwordx4 {vr(vB + 8 * s + 4 * t, 4)}, v{vL16}, {srd(sWS)}, s{sT[1 + 2 * t]} offen offset:{(s % 4) * 1024} sc1')
        ST = 240
        for t in range(2):
            for i in range(2):
                a(f'buffer_load_dwordx4 {vr(ST + 8 * t + 4 * i, 4)}, v{vT[4]}, {srd(sWS)}, s{sT[2]} offen offset:{256 * t + 512 * i} sc1')
        if L == 0:
            pass
        NR = 4
        LA = 3
        segs = ((0, 5), (5, 10), (10, 14)) if L == 0 else ((0, 14),)
        for si, (s0, s1) in enumerate(segs):
            fl = [(s, n) for s in range(s0, s1) for n in range(7)]
            for i in range(LA):
                rd(AF + 4 * (i % NR), *fl[i])
            for i, (s, n) in enumerate(fl):
                if i + LA < len(fl):
                    rd(AF + 4 * ((i + LA) % NR), *fl[i + LA])
                w = f's_waitcnt lgkmcnt({2 * (min(i + LA, len(fl) - 1) - i)})'
                if n == 0 and si == 0:
                    w += f' vmcnt({26 - 2 * s + 4})'
                a(w)
                for t in range(2):
                    acc = ACC + 28 * t + 4 * n
                    c = '0' if s == 0 else vr(acc, 4)
                    a(f'v_mfma_f32_16x16x32_bf16 {vr(acc, 4)}, {vr(AF + 4 * (i % NR), 4)}, {vr(vB + 8 * s + 4 * t, 4)}, {c}')
            if L == 0:
                a('s_waitcnt vmcnt(0)')
                self.w2_read(si)
                self.dma_stage(sW2, 448, 112 * (si + 1))
                if si == 0:
                    a('s_barrier')
        self.stamp('ffn1loop')
        if L == 1:
            a('s_waitcnt vmcnt(0)')
        RS, NM = (vT[5], vT[6]), (vT[7], vT[8])
        for t in range(2):
            st = ST + 8 * t
            for o in range(2):
                a(f'v_add_f32 v{st + o}, v{st + o}, v{st + o + 2}\nv_add_f32 v{st + 4 + o}, v{st + 4 + o}, v{st + 6 + o}\nv_add_f32 v{st + o}, v{st + o}, v{st + 4 + o}')
                self.x16('v_add_f32', st + o, st + 2)
                self.xhalf('v_add_f32', st + o, st + 2)
            self.ln_finish(st, st + 1, RS[t], NM[t])
        CS = vB
        a(f'v_and_b32 v{vT[0]}, 48, v{vLANE}\nv_add_u32 v{vT[0]}, {L_CS1}, v{vT[0]}')
        for n in range(7):
            a(f'ds_read_b128 {vr(CS + 4 * n, 4)}, v{vT[0]} offset:{64 * n}')
        a(f'v_and_b32 v{vT[1]}, 15, v{vLANE}\nv_lshlrev_b32 v{vT[1]}, 4, v{vT[1]}\nv_lshrrev_b32 v{vT[2]}, 4, v{vLANE}')
        a(f'v_lshl_add_u32 v{vT[3]}, v{vT[2]}, 9, v{vT[1]}')
        a(f'v_lshrrev_b32 v{vT[4]}, 1, v{vT[2]}\nv_lshl_add_u32 v{vT[4]}, v{vT[4]}, 9, v{vT[1]}')
        a(f'v_and_b32 v{vT[2]}, 1, v{vT[2]}\nv_lshl_add_u32 v{vT[4]}, v{vT[2]}, 3, v{vT[4]}')
        a(f's_mul_i32 s{sT[0]}, s{sTT}, 114688\ns_mul_i32 s{sT[1]}, s{sJ}, 7168\ns_add_u32 s{sT[0]}, s{sT[0]}, s{sT[1]}\ns_add_u32 s{sT[0]}, s{sT[0]}, {WS_HF}')
        a(f's_add_u32 s{sT[1]}, s{sT[0]}, 4096')
        a('s_waitcnt lgkmcnt(0)')
        PK = vB + 32
        TM = vB + 28
        st = []
        for t in range(2):
            for n in range(7):
                acc = ACC + 28 * t + 4 * n
                for i in range(4):
                    a(f'v_mul_f32 v{acc + i}, v{acc + i}, v{RS[t]}\nv_fmac_f32 v{acc + i}, v{CS + 4 * n + i}, v{NM[t]}')
                for i in range(2):
                    d = PK + 16 * t + 2 * n + i
                    a(f'v_cvt_pk_bf16_f32 v{d}, v{acc + 2 * i}, v{acc + 2 * i + 1}')
                    a(f'v_pk_max_i16 v{d}, v{d}, 0')
            for p in range(3):
                s, off = (sT[0], 2048 * p + 256 * t) if p < 2 else (sT[1], 256 * t)
                st.append(f'buffer_store_dwordx4 {vr(PK + 16 * t + 4 * p, 4)}, v{vT[3]}, {srd(sWS)}, s{s} offen offset:{off}')
            st.append(f'buffer_store_dwordx2 {vr(PK + 16 * t + 12, 2)}, v{vT[4]}, {srd(sWS)}, s{sT[1]} offen offset:{2048 + 256 * t}')
        self.stores(st)
        a(f's_lshl_b32 s{sT[1]}, s{sTT}, 7\ns_lshl_b32 s{sT[2]}, s{sJ}, 3\ns_add_u32 s{sT[1]}, s{sT[1]}, s{sT[2]}\ns_add_u32 s{sT[1]}, s{sT[1]}, {WS_FH}')
        self.flag(sT[1])
        self.stamp('ffn1')
        if L == 0:
            self.w2_read(3)
        a('s_barrier')
        if L == 0:
            self.dma_wqkv()
            sk = a.label('noepoch')
            a(f's_cmp_lg_u32 s{sW}, 0\ns_cbranch_scc1 {sk}')
            a(f's_mov_b64 exec, 1\nv_mov_b32 v{vT[2]}, 1\nv_mov_b32 v{vT[3]}, 0')
            a(f'buffer_atomic_add v{vT[2]}, v{vT[3]}, {srd(sDBG)}, 0 offen sc0')
            a(f's_add_u32 s{sT[0]}, s{sTAG}, 1\ns_addc_u32 s{sT[1]}, s{sTAG + 1}, 0')
            a(f'v_mov_b32 v{vT[4]}, s{sT[0]}\nv_mov_b32 v{vT[5]}, s{sT[1]}')
            a(f's_waitcnt vmcnt(0)\nv_cmp_eq_u32 vcc, 0xff, v{vT[2]}\ns_and_b64 exec, exec, vcc')
            l2 = a.label('noepoch2')
            a(f's_cbranch_execz {l2}')
            a(f'buffer_store_dwordx2 {vr(vT[4], 2)}, v{vT[3]}, {srd(sWS)}, 0 offen offset:{WS_EPOCH}')
            a(f'{l2}:\ns_mov_b64 exec, -1\n{sk}:')

    def ffn2(self, L):
        a = self.a
        R = self.RACC
        BF, NB = 120, 32
        a(f's_xor_b32 s{sT[6]}, s{sTB}, 1\ns_mul_i32 s{sT[6]}, s{sT[6]}, 114688\ns_mul_i32 s{sT[7]}, s{sTB}, 114688')
        a(f's_mul_i32 s{sT[8]}, s{sW}, 28672\ns_add_u32 s{sT[8]}, s{sT[8]}, {WS_HF}')
        a(f's_add_u32 s{sT[6]}, s{sT[6]}, s{sT[8]}\ns_add_u32 s{sT[7]}, s{sT[7]}, s{sT[8]}')
        self.poll8(WS_FH)
        self.stamp('hpolled')

        def ld(i):
            half, ks = divmod(i, 28)
            s = sT[6 + half]
            if ks % 4 == 0 and ks:
                a(f's_add_u32 s{s}, s{s}, 4096')
            a(f'buffer_load_dwordx4 {vr(BF + 4 * (i % NB), 4)}, v{vL16}, {srd(sWS)}, s{s} offen offset:{(ks % 4) * 1024} sc1')
        for i in range(NB):
            ld(i)
        for i in range(56):
            half, ks = divmod(i, 28)
            a(f's_waitcnt vmcnt({min(i + NB, 56) - 1 - i})')
            for bft in range(2):
                blk = R + 16 * (bft + (2 if half == 0 else 0))
                c = '0' if ks == 0 else vr(blk, 16)
                a(f'v_mfma_f32_32x32x16_bf16 {vr(blk, 16)}, {ar((2 * ks + bft) * 4, 4)}, {vr(BF + 4 * (i % NB), 4)}, {c}')
            if i + NB < 56:
                ld(i + NB)
            if half == 1 and ks == 2:
                self.red_write([2])
            if half == 1 and ks == 6:
                self.red_write([3])
        self.stamp('ffn2loop')
        self.red_tail('x2' if L == 0 else 'out')
        self.stamp('ffn2')

    def build(self):
        a = self.a
        self.names = []
        self.entry()
        for L in range(2):
            self.qkv(L); self.maybe_stop(f'qkv{L}')
            self.attention(L); self.maybe_stop(f'attn{L}')
            self.wo(L); self.maybe_stop(f'wo{L}')
            self.ffn1(L); self.maybe_stop(f'ffn1{L}')
            self.ffn2(L); self.maybe_stop(f'ffn2{L}')
        a('L_fin:')
        if self.prof:
            a('s_mov_b64 exec, -1')
            a(f's_memrealtime s[{sSTAMP}:{sSTAMP + 1}]\ns_waitcnt lgkmcnt(0)\nv_writelane_b32 v{vPROF}, s{sSTAMP}, 63')
            a(f's_lshl_b32 s{sT[0]}, s2, 2\ns_add_u32 s{sT[0]}, s{sT[0]}, s{sW}\ns_lshl_b32 s{sT[0]}, s{sT[0]}, 8\ns_add_u32 s{sT[0]}, s{sT[0]}, {WS_PROF}')
            a(f'v_lshlrev_b32 v{vT[0]}, 2, v{vLANE}')
            a(f'buffer_store_dword v{vPROF}, v{vT[0]}, {srd(sWS)}, s{sT[0]} offen')
        a('L_end:\ns_endpgm\nL_code_end:')
        body, nops = a.pad()
        head = open('cdna_kernels/' + NAME + '.s.ref').read().split('\n')
        cm = [l for l in head if l.startswith(';') and '@launch' not in l and not l.startswith('    ')]
        cm = cm[:cm.index([c for c in cm if 'Override launch' in c][0])]
        out = cm + [f'; @launch grid=(256,1,1) block=(256,1,1) lds={LDS_BYTES}',
                    '.amdgcn_target "amdgcn-amd-amdhsa--gfx950"', '.text', f'.globl {NAME}_kernel', '.p2align 8',
                    f'.type {NAME}_kernel,@function', f'{NAME}_kernel:']
        out += body
        out += ['.section .rodata,"a"', '.p2align 6', f'.amdhsa_kernel {NAME}_kernel',
                '  .amdhsa_next_free_vgpr 512', '  .amdhsa_next_free_sgpr 102', '  .amdhsa_accum_offset 256',
                '  .amdhsa_group_segment_fixed_size 0', '  .amdhsa_kernarg_size 72', '  .amdhsa_user_sgpr_count 2',
                '  .amdhsa_user_sgpr_kernarg_segment_ptr 1', '  .amdhsa_system_sgpr_workgroup_id_x 1',
                '.end_amdhsa_kernel']
        return '\n'.join(out) + '\n', nops


if __name__ == '__main__':
    import argparse
    p = argparse.ArgumentParser()
    p.add_argument('-o', default='cdna_kernels/' + NAME + '.s')
    p.add_argument('--stop'); p.add_argument('--prof', action='store_true'); p.add_argument('--slow', action='store_true')
    x = p.parse_args()
    g = Gen(stop=x.stop, prof=x.prof, force_slow=x.slow)
    txt, nops = g.build()
    open(x.o, 'w').write(txt)
    if x.prof:
        open(x.o + '.names', 'w').write('\n'.join(g.names))
    print('lines', txt.count('\n'), 'nop states', nops)
```

```python
import sys, math, struct
sys.path.insert(0, 'gen')
from asmlib import Asm

NAME = 'interleave_layers__sliding_block__dense_activation_relu__prompt'
WS_EPOCH = 0
WS_XID = 0x1000
WS_FO, WS_FX1, WS_FH, WS_FX2, WS_FH2 = 0x2000, 0x4000, 0x6000, 0x8000, 0xA000
WS_FKV = 0x10000
WS_ST1, WS_ST2 = 0x50000, 0x90000
WS_OF, WS_X1F, WS_XF, WS_HF = 0x100000, 0x2C0000, 0x480000, 0x640000
WS_KV = 0xD40000
WS_PK2 = 0x1540000
WS_PKO = 0x1700000
WS_PK1 = 0x1780000
WS_CP1 = 0x1910000
WS_PKQ = 0x1930000
WS_PROF = 0x1A00000
WS_BYTES = 0x2000000
WS_FPK = 0xD0000
NPACK = 544
L_A = 57344
L_B = 107520
L_SLOT = L_B
L_CS = 157696
L_CS1 = L_CS + 384
L_PART = L_CS + 1024
L_SCR = L_CS + 3072
LDS_BYTES = 163840
sX, sWQ, sWO, sW1, sW2, sOUT, sWS, sDBG = 4, 8, 12, 16, 20, 24, 28, 32
sRB, sJ, sW, sFAST, sTH, sFS, sTT = 36, 37, 38, 39, 40, 41, 42
sTAG = 44
sT = list(range(46, 58))
sONES = 58
sSPIN = 59
sM56 = 60
sHI = 62
sCM = 64
sSTAMP = 96
sTB = 98
sFT = 99
sG0, sG1, sG2, sG3 = 3, 43, 100, 101
vLANE, vL16 = 0, 1
vT = list(range(2, 13))
vR1 = 13
vDUM = 14
vPROF = 15
vRES = 16
vWO = 32
vB = 56


def srd(n):
    return f's[{n}:{n + 3}]'


def vr(a, n):
    return f'v[{a}:{a + n - 1}]' if n > 1 else f'v{a}'


def ar(a, n):
    return f'a[{a}:{a + n - 1}]'


def f32(x):
    return '0x%08x' % struct.unpack('<I', struct.pack('<f', x))[0]


def wo_frag(i):
    return ar(224 + 4 * i, 4) if i < 8 else vr(vWO + 4 * (i - 8), 4)


MF32 = 'v_mfma_f32_32x32x16_bf16'
MF16 = 'v_mfma_f32_16x16x32_bf16'


class Gen:
    def __init__(self, stop=None, prof=False, force_slow=False, touch=True, PRE=8, LIM=60, **opt):
        self.a = Asm()
        self.stop = stop
        self.prof = prof
        self.force_slow = force_slow
        self.touch_on = touch
        self.PRE = PRE
        self.LIM = LIM
        self.nstamp = 0
        self.vm = []
        self.seen = set()
        self.phase = 0
        self.opt = opt

    def iss(self, text, tag=None):
        self.a(text)
        self.vm.append(tag)
        self.seen.add((self.phase, tag))

    def vmn(self, tag):
        idx = [i for i, t in enumerate(self.vm) if t == tag]
        return None if not idx else len(self.vm) - 1 - idx[-1]

    def wait(self, tag=None, lgkm=None):
        parts = []
        n = self.vmn(tag) if tag is not None else None
        assert tag is None or (self.phase, tag) in self.seen, tag
        if n is not None:
            assert n < 64
            parts.append(f'vmcnt({n})')
            self.vm = self.vm[len(self.vm) - n:] if n else []
        if lgkm is not None:
            assert lgkm < 16
            parts.append(f'lgkmcnt({lgkm})')
        if parts:
            self.a('s_waitcnt ' + ' '.join(parts))

    def drain(self):
        self.a('s_waitcnt vmcnt(0)')
        self.vm = []

    def stamp(self, name):
        if self.prof != 1:
            return
        self.a(f's_memtime s[{sSTAMP}:{sSTAMP + 1}]\ns_waitcnt lgkmcnt(0)\nv_writelane_b32 v{vPROF}, s{sSTAMP}, {self.nstamp}  ; {name}')
        self.names.append(name)
        self.nstamp += 1

    def maybe_stop(self, tag):
        if self.stop == tag:
            self.a('s_waitcnt vmcnt(0) lgkmcnt(0)\ns_branch L_fin')

    def poll(self, voff, soff, mask, tmp):
        a = self.a
        lp = a.label('poll')
        a('s_mov_b32 exec_hi, 0' if mask == '0xffffffff' else f's_mov_b64 exec, {mask}')
        a(f'{lp}:')
        a(f'buffer_load_dwordx2 {vr(tmp, 2)}, v{voff}, {srd(sWS)}, s{soff} offen sc1')
        a(f's_sub_u32 s{sSPIN}, s{sSPIN}, 1')
        a('s_cbranch_scc1 L_fin')
        a('s_waitcnt vmcnt(0)')
        a(f'v_cmp_ne_u64 vcc, s[{sTAG}:{sTAG + 1}], {vr(tmp, 2)}')
        a(f's_cbranch_vccnz {lp}')
        a('s_mov_b64 exec, -1')
        self.vm = []

    def flag(self, soff, always_sc1=False, after=None):
        a = self.a
        n = self.vmn(after) if after else 0
        a(f'v_mov_b32 v{vT[0]}, s{sTAG}\nv_mov_b32 v{vT[1]}, s{sTAG + 1}\nv_mov_b32 v{vT[2]}, 0')
        a('s_mov_b64 exec, 1')
        self.stores([f'buffer_store_dwordx2 {vr(vT[0], 2)}, v{vT[2]}, {srd(sWS)}, s{soff} offen'], always_sc1, pre=f's_waitcnt vmcnt({n})')
        self.vm = self.vm[len(self.vm) - n - 1:]
        a('s_mov_b64 exec, -1')

    def stores(self, lst, always_sc1=False, pre=None):
        a = self.a
        n = sum(s.startswith('buffer_store') for s in lst)
        self.vm += ['st'] * n
        if pre:
            lst = [pre] + lst
        if always_sc1:
            for s in lst:
                a(s + ' sc1' if s.startswith('buffer_store') else s)
            return
        sl, dn = a.label('slow'), a.label('stored')
        a(f's_cmp_eq_u32 s{sFAST}, 0\ns_cbranch_scc1 {sl}')
        for s in lst:
            a(s)
        a(f'{dn}:')
        self.cold.append([f'{sl}:'] + [s + ' sc1' if s.startswith('buffer_store') else s for s in lst] + [f's_branch {dn}'])

    def dma(self, sr, voff, gbase, gimm, lbase, limm, extra='', tag=None, count=True):
        a = self.a
        a(f's_add_u32 s{sT[11]}, s{gbase}, {gimm}')
        a(f's_add_u32 m0, s{lbase}, {limm}')
        a(f'buffer_load_dwordx4 v{voff}, {srd(sr)}, s{sT[11]} offen{extra} lds')
        if count:
            self.vm.append(tag)
            self.seen.add((self.phase, tag))

    def touch(self, base, mul_tt, nl, tt=sTT, sub=sJ):
        if not self.touch_on:
            return
        a = self.a
        a(f's_mul_i32 s{sT[10]}, s{tt}, {mul_tt}\ns_mul_i32 s{sT[11]}, s{sub}, {nl * 128}\ns_add_u32 s{sT[10]}, s{sT[10]}, s{sT[11]}')
        a(f's_add_u32 s{sT[10]}, s{sT[10]}, {base}')
        self.touch_go(sWS, nl, 128)

    def touch_go(self, sr, nl, pitch, count=True):
        a = self.a
        a(f'v_mul_u32_u24 v{vDUM}, {pitch}, v{vLANE}')
        if nl < 64:
            a(f's_mov_b32 exec_lo, {hex(((1 << nl) - 1) & 0xffffffff)}\ns_mov_b32 exec_hi, {hex(((1 << nl) - 1) >> 32)}')
        a(f'buffer_load_dword v{vDUM}, v{vDUM}, {srd(sr)}, s{sT[10]} offen')
        if count:
            self.vm.append(None)
        a('s_mov_b64 exec, -1')

    def touch_xcd(self, sr, base, nbytes, parts=128, count=True):
        a = self.a
        nl = -(-nbytes // 128 // parts)
        a(f's_lshr_b32 s{sT[10]}, s2, 3')
        if parts == 128:
            a(f's_lshl_b32 s{sT[10]}, s{sT[10]}, 2\ns_add_u32 s{sT[10]}, s{sT[10]}, s{sW}')
        a(f's_mul_i32 s{sT[10]}, s{sT[10]}, {nl * 128}\ns_add_u32 s{sT[10]}, s{sT[10]}, {base}')
        while nl > 0:
            self.touch_go(sr, min(nl, 64), 128, count)
            nl -= 64
            if nl > 0:
                a(f's_add_u32 s{sT[10]}, s{sT[10]}, 8192')

    def xhalf(self, op, x, tmp):
        self.a(f'v_mov_b32 v{tmp}, v{x}\nv_permlane32_swap_b32 v{x}, v{tmp}\n{op} v{x}, v{x}, v{tmp}')

    def x16(self, op, x, tmp):
        self.a(f'v_mov_b32 v{tmp}, v{x}\nv_permlane16_swap_b32 v{x}, v{tmp}\n{op} v{x}, v{x}, v{tmp}')

    def ln_finish(self, s, q, rs, nm):
        a = self.a
        a(f'v_mul_f32 v{s}, {f32(-1 / 448)}, v{s}')
        a(f'v_mul_f32 v{q}, {f32(1 / 448)}, v{q}')
        a(f'v_fma_f32 v{q}, -v{s}, v{s}, v{q}')
        a(f'v_max_f32 v{q}, 0, v{q}')
        a(f'v_add_f32 v{q}, {f32(1e-5)}, v{q}')
        a(f'v_rsq_f32 v{rs}, v{q}')
        a(f'v_mul_f32 v{nm}, v{s}, v{rs}')

    def rows16(self, v, pitch):
        a = self.a
        a(f'v_lshrrev_b32 v{v}, 2, v{vLANE}\nv_mul_u32_u24 v{v}, {pitch}, v{v}')
        a(f'v_and_b32 v{vT[1]}, 3, v{vLANE}\nv_lshl_add_u32 v{v}, v{vT[1]}, 4, v{v}')

    def st_wkv(self, v):
        a = self.a
        self.rows16(v, 2688)
        a(f's_and_b32 s{sT[2]}, s{sW}, 1\ns_lshr_b32 s{sT[3]}, s{sW}, 1')
        a(f's_mul_i32 s{sG0}, s{sT[2]}, 896\ns_mul_i32 s{sT[4]}, s{sJ}, 56\ns_add_u32 s{sG0}, s{sG0}, s{sT[4]}')
        a(f's_mul_i32 s{sT[5]}, s{sT[3]}, {16 * 2688}\ns_add_u32 s{sG0}, s{sG0}, s{sT[5]}')
        a(f's_mul_i32 s{sG1}, s{sT[2]}, 28672\ns_lshl_b32 s{sT[3]}, s{sT[3]}, 10\ns_add_u32 s{sG1}, s{sG1}, s{sT[3]}')
        return [lambda i=i: self.dma(sWQ, v, sG0, 896 + i * 32 * 2688, sG1, i * 2048, tag=('kv', i)) for i in range(14)]

    def st_wq(self, v, setup_v=True):
        a = self.a
        if setup_v:
            self.rows16(v, 2688)
        a(f's_mul_i32 s{sG2}, s{sW}, {16 * 2688}\ns_mul_i32 s{sT[4]}, s{sJ}, 56\ns_add_u32 s{sG2}, s{sG2}, s{sT[4]}\ns_lshl_b32 s{sG3}, s{sW}, 10')
        return [lambda i=i: self.dma(sWQ, v, sG2, i * 64 * 2688, sG3, L_B + i * 4096, tag='wq') for i in range(7)]

    def st_pq(self):
        a = self.a
        a(f's_mul_i32 s{sG2}, s{sJ}, 28672\ns_lshl_b32 s{sG3}, s{sW}, 10\ns_add_u32 s{sG2}, s{sG2}, s{sG3}')
        return [lambda i=i: self.dma(sWS, vL16, sG2, WS_PKQ + i * 4096, sG3, L_B + i * 4096, tag='wq') for i in range(7)]

    def st_w1(self, part):
        a = self.a
        a(f's_mul_i32 s{sG0}, s{sJ}, 100352\ns_add_u32 s{sG0}, s{sG0}, {WS_PK1 + 49 * 1024 * part}\ns_lshl_b32 s{sG1}, s{sW}, 10')
        a(f's_add_u32 s{sG0}, s{sG0}, s{sG1}')

        def one(u):
            if u == 12:
                a(f's_sub_u32 s{sG0}, s{sG0}, s{sG1}\ns_mov_b32 s{sG1}, 0')
            self.dma(sWS, vL16, sG0, 4096 * u, sG1, L_A + 49 * 1024 * part + 4096 * u, self.opt.get("pksc", ""), tag='w1')
        return [lambda u=u: one(u) for u in range(13)]

    def st_pack(self, base, nks, dst):
        def setup():
            a = self.a
            a(f's_mul_i32 s{sG2}, s{sFS}, {4 * nks * 2048}\ns_mul_i32 s{sT[2]}, s{sW}, {nks * 2048}\ns_add_u32 s{sG2}, s{sG2}, s{sT[2]}')
            a(f's_add_u32 s{sG2}, s{sG2}, {base}\ns_lshl_b32 s{sT[2]}, s{sFT}, 10\ns_add_u32 s{sG3}, s{sG2}, 1024')
            a(f's_add_u32 s{sG2}, s{sG2}, s{sT[2]}\ns_sub_u32 s{sG3}, s{sG3}, s{sT[2]}')
        first = [True]

        def one(i):
            ks, bft = divmod(i, 2)
            if first[0]:
                setup()
                first[0] = False
            self.a(f's_add_u32 s{sT[11]}, s{(sG2, sG3)[bft]}, {ks * 2048}')
            self.iss(f'buffer_load_dwordx4 {dst(i)}, v{vL16}, {srd(sWS)}, s{sT[11]} offen{self.opt.get("pksc", "")}', 'pk')
        return [lambda i=i: one(i) for i in range(2 * nks)]

    def tr_base(self, v, hrows):
        a = self.a
        a(f'v_lshrrev_b32 v{v}, 5, v{vLANE}\nv_mul_u32_u24 v{v}, {hrows}, v{v}\nv_bfe_u32 v{vT[1]}, v{vLANE}, 2, 2')
        a(f'v_add_u32 v{v}, v{v}, v{vT[1]}\nv_lshlrev_b32 v{v}, 6, v{v}')
        a(f'v_bfe_u32 v{vT[1]}, v{vLANE}, 4, 1\nv_lshl_add_u32 v{v}, v{vT[1]}, 5, v{v}')
        a(f'v_and_b32 v{vT[1]}, 3, v{vLANE}\nv_lshl_add_u32 v{v}, v{vT[1]}, 3, v{v}')

    def repack_roles(self, labs, skip):
        a = self.a
        a(f's_cmp_eq_u32 s{sW}, 0\ns_cbranch_scc1 {labs[0]}')
        a(f's_cmp_eq_u32 s{sW}, 2\ns_cselect_b32 s{sT[7]}, 224, 64\ns_cmp_ge_u32 s2, s{sT[7]}\ns_cbranch_scc1 {skip}')
        a(f's_cmp_eq_u32 s{sW}, 1\ns_cbranch_scc1 {labs[1]}\ns_cmp_eq_u32 s{sW}, 3\ns_cbranch_scc1 {labs[2]}')

    def repack_dma(self):
        a = self.a
        l0, l1, l3, sk = a.label('rl0'), a.label('rl1'), a.label('rl3'), a.label('rls')
        v = vT[7]
        self.rows16(v, 896)
        a(f's_lshr_b32 s{sT[0]}, s2, 4\ns_mul_i32 s{sT[0]}, s{sT[0]}, {112 * 896}\ns_bfe_u32 s{sT[1]}, s2, 0x30001')
        a(f's_mul_i32 s{sT[1]}, s{sT[1]}, 112\ns_add_u32 s{sT[0]}, s{sT[0]}, s{sT[1]}\ns_and_b32 s{sT[1]}, s2, 1\ns_lshl_b32 s{sT[1]}, s{sT[1]}, 6')
        a(f's_add_u32 s{sT[0]}, s{sT[0]}, s{sT[1]}\ns_mul_i32 s{self.xs}, s{sW}, 7168\ns_add_u32 s{self.xs}, s{self.xs}, {L_A}')
        self.repack_roles((l0, l1, l3), sk)
        a(f'v_mul_u32_u24 v{vT[1]}, 4682, v{vLANE}\nv_lshrrev_b32 v{vT[1]}, 16, v{vT[1]}')
        a(f'v_mul_u32_u24 v{v}, 14, v{vT[1]}\nv_sub_u32 v{v}, v{vLANE}, v{v}\nv_lshlrev_b32 v{v}, 4, v{v}')
        a(f'v_mul_u32_u24 v{vT[1]}, 3584, v{vT[1]}\nv_add_u32 v{v}, v{v}, v{vT[1]}')
        a(f's_lshr_b32 s{sT[0]}, s2, 4\ns_mul_i32 s{sT[0]}, s{sT[0]}, {32 * 3584}\ns_and_b32 s{sT[1]}, s2, 15\ns_mul_i32 s{sT[1]}, s{sT[1]}, 224')
        a(f's_add_u32 s{sT[0]}, s{sT[0]}, s{sT[1]}\ns_mov_b64 exec, s[{sM56}:{sM56 + 1}]')
        for i in range(8):
            self.dma(sW1, v, sT[0], i * 4 * 3584, self.xs, 896 * i, count=False)
        a(f's_mov_b64 exec, -1\ns_branch {sk}\n{l3}:')
        self.rows16(v, 2688)
        a(f's_lshr_b32 s{sT[0]}, s2, 4\ns_mul_i32 s{sT[0]}, s{sT[0]}, {112 * 2688}\ns_and_b32 s{sT[1]}, s2, 15\ns_mul_i32 s{sT[1]}, s{sT[1]}, 56')
        a(f's_add_u32 s{sT[0]}, s{sT[0]}, s{sT[1]}')
        for i in range(7):
            self.dma(sWQ, v, sT[0], i * 16 * 2688, self.xs, 1024 * i, count=False)
        a(f's_branch {sk}')
        for lab, sr in ((l1, sWO), (l0, sW2)):
            a(f'{lab}:')
            for i in range(7):
                self.dma(sr, v, sT[0], i * 16 * 896, self.xs, 1024 * i, count=False)
            if sr == sWO:
                a(f's_branch {sk}')
        a(f'{sk}:')

    def repack_store(self, T):
        a = self.a
        l0, l1, l3, sk, go = a.label('rs0'), a.label('rs1'), a.label('rs3'), a.label('rss'), a.label('rsg')
        v4, v8, vw = vT[2], vT[3], vT[4]
        self.tr_base(v4, 4)
        self.tr_base(v8, 8)
        a(f'v_add_u32 v{v4}, s{self.xs}, v{v4}\nv_add_u32 v{v8}, s{self.xs}, v{v8}')
        a(f's_lshr_b32 s{sT[0]}, s2, 4\ns_mul_i32 s{sT[0]}, s{sT[0]}, {7 * 2048}\ns_and_b32 s{sT[1]}, s2, 1\ns_lshl_b32 s{sT[1]}, s{sT[1]}, 10')
        a(f's_add_u32 s{sT[0]}, s{sT[0]}, s{sT[1]}\ns_bfe_u32 s{sT[1]}, s2, 0x30001')
        self.repack_roles((l0, l1, l3), sk)
        a(f'v_lshrrev_b32 v{v4}, 4, v{vLANE}\nv_lshlrev_b32 v{v4}, 3, v{v4}\nv_bfe_u32 v{vT[1]}, v{vLANE}, 2, 2\nv_add_u32 v{v4}, v{v4}, v{vT[1]}')
        a(f'v_mul_u32_u24 v{v4}, 224, v{v4}\nv_and_b32 v{vT[1]}, 3, v{vLANE}\nv_lshl_add_u32 v{v4}, v{vT[1]}, 3, v{v4}\nv_add_u32 v{v4}, s{self.xs}, v{v4}')
        for n in range(7):
            for e2 in range(2):
                a(f'ds_read_b64_tr_b16 {vr(T + 4 * n + 2 * e2, 2)}, v{v4} offset:{32 * n + 896 * e2}')
        a(f's_lshr_b32 s{sT[2]}, s2, 4\ns_and_b32 s{sT[1]}, s2, 15\ns_mul_i32 s{sT[0]}, s{sT[1]}, 100352\ns_add_u32 s{sT[0]}, s{sT[0]}, {WS_PK1}')
        a(f's_mul_i32 s{sT[3]}, s{sT[2]}, 3072\ns_add_u32 s{sT[3]}, s{sT[3]}, s{sT[0]}\ns_add_u32 s{sT[3]}, s{sT[3]}, {56 * 1024}')
        a(f's_lshl_b32 s{sT[4]}, s{sT[2]}, 12\ns_add_u32 s{sT[0]}, s{sT[0]}, s{sT[4]}')
        a(f's_mul_i32 s{sT[2]}, s{sT[2]}, 7168\ns_mul_i32 s{sT[1]}, s{sT[1]}, 448\ns_add_u32 s{sT[2]}, s{sT[2]}, s{sT[1]}\ns_add_u32 s{sT[2]}, s{sT[2]}, {WS_CP1}')
        on = T + 28
        for i in range(4):
            a(f'v_mov_b32 v{on + i}, s{sONES}')
        D = T + 32
        for n in range(7):
            a(f's_waitcnt lgkmcnt({12 - 2 * n})')
            s_, off = (sT[0], 1024 * n) if n < 4 else (sT[3], 1024 * (n - 4))
            a(f'buffer_store_dwordx4 {vr(T + 4 * n, 4)}, v{vL16}, {srd(sWS)}, s{s_} offen offset:{off} sc1')
            a(f'{MF16} {vr(D + 4 * n, 4)}, {vr(T + 4 * n, 4)}, {vr(on, 4)}, 0')
        a(f'v_and_b32 v{vT[1]}, 48, v{vLANE}\ns_mov_b32 exec_lo, 0x00010001\ns_mov_b32 exec_hi, 0x00010001')
        for n in range(7):
            a(f'buffer_store_dwordx4 {vr(D + 4 * n, 4)}, v{vT[1]}, {srd(sWS)}, s{sT[2]} offen offset:{64 * n} sc1')
        a(f's_mov_b64 exec, -1\ns_branch {sk}\n{l3}:')
        for q in range(7):
            for e2 in range(2):
                a(f'ds_read_b64_tr_b16 {vr(T + 4 * q + 2 * e2, 2)}, v{v8} offset:{(16 * q + 4 * e2) * 64}')
        a(f's_lshr_b32 s{sT[0]}, s2, 4\ns_mul_i32 s{sT[0]}, s{sT[0]}, 7168\ns_and_b32 s{sT[1]}, s2, 15\ns_mul_i32 s{sT[1]}, s{sT[1]}, 28672')
        a(f's_add_u32 s{sT[0]}, s{sT[0]}, s{sT[1]}\ns_add_u32 s{sT[0]}, s{sT[0]}, {WS_PKQ}\ns_add_u32 s{sT[1]}, s{sT[0]}, 4096')
        for q in range(7):
            a(f's_waitcnt lgkmcnt({12 - 2 * q})')
            a(f'buffer_store_dwordx4 {vr(T + 4 * q, 4)}, v{vL16}, {srd(sWS)}, s{sT[q >> 2]} offen offset:{1024 * (q & 3)} sc1')
        a(f's_branch {sk}')
        for lab, nat in ((l1, True), (l0, False)):
            a(f'{lab}:')
            for q in range(7):
                for e2 in range(2):
                    b, row = (v8, 16 * q + 4 * e2) if (nat or q == 6) else (v4, 32 * (q >> 1) + 16 * e2 + 8 * (q & 1))
                    a(f'ds_read_b64_tr_b16 {vr(T + 4 * q + 2 * e2, 2)}, v{b} offset:{row * 64}')
            a(f's_mul_i32 s{sT[1]}, s{sT[1]}, {(28 if nat else 112) * 2048}\ns_add_u32 s{sT[0]}, s{sT[0]}, {WS_PKO if nat else WS_PK2}')
            if nat:
                a(f's_branch {go}')
        a(f'{go}:\ns_add_u32 s{sT[0]}, s{sT[0]}, s{sT[1]}')
        for q in range(7):
            if q % 2 == 0 and q:
                a(f's_add_u32 s{sT[0]}, s{sT[0]}, 4096')
            a(f's_waitcnt lgkmcnt({12 - 2 * q})')
            a(f'buffer_store_dwordx4 {vr(T + 4 * q, 4)}, v{vL16}, {srd(sWS)}, s{sT[0]} offen offset:{2048 * (q % 2)} sc1')
        a(f'{sk}:')

    def repack_arrive(self):
        a = self.a
        l0, sk = a.label('ra0'), a.label('ras')
        self.repack_roles((l0, l0, l0), sk)
        a(f'{l0}:\ns_lshl_b32 s{sT[0]}, s{sW}, 8\ns_add_u32 s{sT[0]}, s{sT[0]}, s2\ns_lshl_b32 s{sT[0]}, s{sT[0]}, 7\ns_add_u32 s{sT[0]}, s{sT[0]}, {WS_FPK}')
        a(f's_mov_b64 exec, 1\nv_mov_b32 v{vT[2]}, s{sTAG}\nv_mov_b32 v{vT[3]}, s{sTAG + 1}\nv_mov_b32 v{vT[4]}, 0')
        a(f'buffer_store_dwordx2 {vr(vT[2], 2)}, v{vT[4]}, {srd(sWS)}, s{sT[0]} offen sc1\ns_mov_b64 exec, -1')
        a(f'{sk}:')

    def repack_ask(self, ad, r):
        a = self.a
        a(f's_lshl_b32 s{sT[0]}, s{sW}, 6\ns_lshl_b32 s{sT[1]}, s{sFS}, 1\ns_add_u32 s{sT[0]}, s{sT[0]}, s{sT[1]}')
        a(f'v_lshrrev_b32 v{ad}, 1, v{vLANE}\nv_lshlrev_b32 v{ad}, 4, v{ad}\nv_and_b32 v{r}, 1, v{vLANE}\nv_add3_u32 v{ad}, v{ad}, v{r}, s{sT[0]}')
        a(f's_lshl_b32 s{sT[0]}, s{sW}, 4\ns_add_u32 s{sT[0]}, s{sT[0]}, s{sT[1]}\ns_add_u32 s{sT[0]}, s{sT[0]}, 256')
        a(f'v_add_u32 v{r}, s{sT[0]}, v{r}\nv_cmp_lt_u32 vcc, 7, v{vLANE}\nv_cndmask_b32 v{ad}, v{ad}, v{r}, vcc')
        a(f's_add_u32 s{sT[0]}, s{sJ}, {768 - 160}\nv_lshl_add_u32 v{r}, v{vLANE}, 4, s{sT[0]}\nv_cmp_lt_u32 vcc, 9, v{vLANE}\nv_cndmask_b32 v{ad}, v{ad}, v{r}, vcc')
        a(f's_add_u32 s{sT[0]}, s{sJ}, 256\nv_lshl_add_u32 v{r}, v{vLANE}, 4, s{sT[0]}\nv_cmp_lt_u32 vcc, 15, v{vLANE}\nv_cndmask_b32 v{ad}, v{ad}, v{r}, vcc')
        a(f'v_lshlrev_b32 v{ad}, 7, v{ad}\ns_mov_b32 s{sT[5]}, {WS_FPK}\ns_mov_b64 exec, 0x3fff3fff')
        self.iss(f'buffer_load_dwordx2 {vr(r, 2)}, v{ad}, {srd(sWS)}, s{sT[5]} offen sc1', 'pkf')
        a('s_mov_b64 exec, -1')

    def check(self, ad, so, r, mask, width=2):
        a = self.a
        lp, ok = a.label('chk'), a.label('chkok')
        a(f's_mov_b64 exec, {mask}\nv_cmp_ne_u64 vcc, s[{sTAG}:{sTAG + 1}], {vr(r, 2)}\ns_cbranch_vccnz {lp}\n{ok}:')
        self.cold.append([f'{lp}:', f'buffer_load_dwordx{width} {vr(r, width)}, v{ad}, {srd(sWS)}, s{so} offen sc1',
                          f's_sub_u32 s{sSPIN}, s{sSPIN}, 1', 's_cbranch_scc1 L_fin', 's_waitcnt vmcnt(0)',
                          f'v_cmp_ne_u64 vcc, s[{sTAG}:{sTAG + 1}], {vr(r, 2)}', f's_cbranch_vccnz {lp}', f's_branch {ok}'])

    def epoch(self):
        a = self.a
        sk = a.label('noepoch')
        a(f's_or_b32 s{sT[0]}, s2, s{sW}\ns_cmp_lg_u32 s{sT[0]}, 0\ns_cbranch_scc1 {sk}')
        a(f'v_mov_b32 v{vT[4]}, s{sTAG}\nv_mov_b32 v{vT[5]}, s{sTAG + 1}\nv_lshlrev_b32 v{vT[0]}, 7, v{vLANE}')
        a(f's_sub_u32 s{sTAG}, s{sTAG}, 1\ns_subb_u32 s{sTAG + 1}, s{sTAG + 1}, 0')
        for i in range(4):
            a(f's_mov_b32 s{sT[0]}, {WS_FPK + 8192 * i}')
            self.poll(vT[0], sT[0], '-1', vT[2])
        a(f's_mov_b64 exec, 1\nv_mov_b32 v{vT[3]}, 0')
        a(f'buffer_store_dwordx2 {vr(vT[4], 2)}, v{vT[3]}, {srd(sWS)}, 0 offen offset:{WS_EPOCH}')
        a(f'{sk}:')

    def entry(self):
        a = self.a
        a('L_code_start:')
        a(f's_getpc_b64 s[{sT[0]}:{sT[1]}]')
        a('s_cmp_ge_u32 s2, 256\ns_cbranch_scc1 L_end')
        for s, off in ((sX, 0), (sWQ, 8), (sWS, 64), (sWO, 16), (sW1, 32), (sW2, 40), (sOUT, 48), (sDBG, 56)):
            a(f's_load_dwordx2 s[{s}:{s + 1}], s[0:1], {off}')
        a(f'v_lshlrev_b32 v{vT[0]}, 7, v0')
        a(f's_mov_b32 s{sT[2]}, L_code_end-L_code_start-8')
        a(f'v_min_u32 v{vT[1]}, s{sT[2]}, v{vT[0]}')
        self.iss(f'global_load_dword v{vDUM}, v{vT[1]}, s[{sT[0]}:{sT[1]}]')
        a(f'v_add_u32 v{vT[0]}, 0x8000, v{vT[0]}\nv_min_u32 v{vT[2]}, s{sT[2]}, v{vT[0]}')
        self.iss(f'global_load_dword v{vDUM}, v{vT[2]}, s[{sT[0]}:{sT[1]}]')
        a(f'v_lshrrev_b32 v{vT[4]}, 6, v0\nv_and_b32 v{vLANE}, 63, v0\nv_readfirstlane_b32 s{sW}, v{vT[4]}')
        a(f'v_lshlrev_b32 v{vL16}, 4, v{vLANE}')
        if self.prof:
            a(f'v_mov_b32 v{vPROF}, 0\ns_memrealtime s[{sSTAMP}:{sSTAMP + 1}]')
        for s, n in ((sX, 1835008), (sWQ, 1204224), (sWS, WS_BYTES), (sWO, 401408), (sW1, 1605632), (sW2, 1605632),
                     (sOUT, 1835008), (sDBG, 256)):
            a(f's_mov_b32 s{s + 2}, {n}\ns_mov_b32 s{s + 3}, 0x20000')
        a(f's_and_b32 s{sRB}, s2, 7\ns_lshl_b32 s{sRB}, s{sRB}, 1\ns_lshr_b32 s{sJ}, s2, 7\ns_add_u32 s{sRB}, s{sRB}, s{sJ}')
        a(f's_lshr_b32 s{sJ}, s2, 3\ns_and_b32 s{sJ}, s{sJ}, 15')
        a(f's_lshl_b32 s{sTT}, s{sRB}, 2\ns_add_u32 s{sTT}, s{sTT}, s{sW}')
        ve, vo = vT[6], vT[7]
        a(f'v_lshrrev_b32 v{vT[4]}, 3, v{vLANE}\nv_mul_u32_u24 v{ve}, 896, v{vT[4]}\nv_lshrrev_b32 v{vT[4]}, 1, v{vT[4]}')
        a(f'v_and_b32 v{vT[5]}, 7, v{vLANE}\nv_xor_b32 v{vT[4]}, v{vT[4]}, v{vT[5]}\nv_lshl_add_u32 v{ve}, v{vT[4]}, 4, v{ve}')
        a(f'v_xor_b32 v{vo}, 64, v{ve}\nv_lshlrev_b32 v{vT[8]}, 3, v{vL16}')
        a(f's_mul_i32 s{sT[4]}, s{sTT}, 28672\ns_mul_i32 s{sT[5]}, s{sW}, 24576\ns_add_u32 s{sT[5]}, s{sT[5]}, {L_A}')
        a(f's_mul_i32 s{sT[6]}, s{sJ}, 1792\ns_add_u32 s{sT[6]}, s{sT[6]}, s{sT[4]}')
        a(f's_lshr_b32 s{sT[7]}, s2, 3\ns_lshl_b32 s{sT[7]}, s{sT[7]}, 2\ns_add_u32 s{sT[7]}, s{sT[7]}, s{sW}\ns_mul_i32 s{sT[7]}, s{sT[7]}, 49')
        a('s_waitcnt lgkmcnt(0)')
        if self.prof:
            a(f'v_writelane_b32 v{vPROF}, s{sSTAMP}, 62')
        self.stamp('karg')
        a(f's_load_dwordx2 s[{sTAG}:{sTAG + 1}], s[{sWS}:{sWS + 1}], {WS_EPOCH}')
        t0 = self.opt.get('t0', 2)
        if t0 >= 1:
            a('s_mov_b64 exec, 0x3fff')
            self.iss(f'buffer_load_dword v{vDUM}, v{vT[8]}, {srd(sX)}, s{sT[6]} offen')
            a('s_mov_b64 exec, -1')
        if t0 == 2:
            a(f'v_add_u32 v{vT[9]}, s{sT[7]}, v{vLANE}\nv_mul_u32_u24 v{vT[8]}, 4682, v{vT[9]}\nv_lshrrev_b32 v{vT[8]}, 16, v{vT[8]}')
            a(f'v_mul_u32_u24 v{vT[8]}, 896, v{vT[8]}\nv_lshl_add_u32 v{vT[8]}, v{vT[9]}, 7, v{vT[8]}\ns_mov_b32 exec_hi, 0x1ffff')
            self.iss(f'buffer_load_dword v{vDUM}, v{vT[8]}, {srd(sWQ)}, 0 offen offset:896')
            a('s_mov_b64 exec, -1')
        for cb in range(6):
            for rg in range(4):
                self.dma(sX, (ve, vo)[rg & 1], sT[4], rg * 7168 + cb * 128, sT[5], (cb * 4 + rg) * 1024, tag=('x', cb))
        for rg in range(4):
            a(f's_add_u32 s{sT[11]}, s{sT[4]}, {rg * 7168 + 768}')
            self.iss(f'buffer_load_dwordx4 {vr(vB + 96 + 4 * rg, 4)}, v{(ve, vo)[rg & 1]}, {srd(sX)}, s{sT[11]} offen', ('x', 6))
        self.stamp('xissued')
        a(f's_mov_b32 s{sM56}, -1\ns_mov_b32 s{sM56 + 1}, 0x00ffffff\ns_mov_b32 s{sHI}, 0\ns_mov_b32 s{sHI + 1}, -1')
        self.xs = sT[9]
        a(f's_mov_b32 s{self.xs}, s{sT[5]}')
        a(f's_lshr_b32 s{sTH}, s{sJ}, 3\ns_and_b32 s{sFS}, s{sJ}, 7')
        a(f's_lshl_b32 s{sTB}, s{sRB}, 2\ns_lshl_b32 s{sT[3]}, s{sTH}, 1\ns_add_u32 s{sTB}, s{sTB}, s{sT[3]}')
        a(f's_lshr_b32 s{sT[3]}, s{sW}, 1\ns_add_u32 s{sTB}, s{sTB}, s{sT[3]}\ns_and_b32 s{sFT}, s{sW}, 1')
        a(f's_mov_b32 s{sONES}, 0x3f803f80\ns_mov_b32 s{sSPIN}, 0x100000')

    ACK, ACV, ACQ, AF = 168, 184, 200, 216
    vRS, vNM, vTR, vBG = 12, 13, 11, 10
    RPT = 176

    def kv_steps(self, ks0, ks1, cs=None, bg=None, vtag=None):
        a = self.a
        AF, LA = self.AF, 3

        def rd(ks, sec):
            sl = AF + 8 * (ks % 4)
            for e2 in range(2):
                a(f'ds_read_b64_tr_b16 {vr(sl + 4 * sec + 2 * e2, 2)}, v{self.vTR} offset:{sec * 28672 + ks * 1024 + e2 * 256}')
        for ks in range(ks0, min(ks0 + LA, ks1)):
            rd(ks, 0); rd(ks, 1)
        for ks in range(ks0, ks1):
            self.wait((vtag, ks) if vtag else None, 4 * (min(ks + LA - 1, ks1 - 1) - ks))
            sl = AF + 8 * (ks % 4)
            b = vr(vB + 4 * ks, 4)
            ck = '0' if ks == 0 else vr(self.ACK, 16)
            cv = '0' if ks == 0 else vr(self.ACV, 16)
            a(f'{MF32} {vr(self.ACK, 16)}, {vr(sl, 4)}, {b}, {ck}')
            if bg:
                bg(ks)
            if ks + LA < ks1:
                rd(ks + LA, 0)
            if cs:
                for i in range(4):
                    a(f'v_dot2c_f32_bf16 v{cs[0] + (i & 1)}, s{sONES}, v{sl + i}')
            a(f'{MF32} {vr(self.ACV, 16)}, {b}, {vr(sl + 4, 4)}, {cv}')
            if ks + LA < ks1:
                rd(ks + LA, 1)
            if cs:
                for i in range(4):
                    a(f'v_dot2c_f32_bf16 v{cs[1] + (i & 1)}, s{sONES}, v{sl + 4 + i}')

    def q_steps(self, ks0, ks1, cs=None, packed=False):
        a = self.a
        AF, LA = self.AF, 6
        per = 1 if packed else 2

        def rd(ks):
            sl = AF + 4 * (ks % 8)
            if packed:
                a(f'ds_read_b128 {vr(sl, 4)}, v{self.vTR} offset:{ks * 1024}')
                return
            for e2 in range(2):
                a(f'ds_read_b64_tr_b16 {vr(sl + 2 * e2, 2)}, v{self.vTR} offset:{ks * 1024 + e2 * 256}')
        for ks in range(ks0, min(ks0 + LA, ks1)):
            rd(ks)
        for ks in range(ks0, ks1):
            a(f's_waitcnt lgkmcnt({per * (min(ks + LA - 1, ks1 - 1) - ks)})')
            sl = AF + 4 * (ks % 8)
            c = '0' if ks == 0 else vr(self.ACQ, 16)
            a(f'{MF32} {vr(self.ACQ, 16)}, {vr(sl, 4)}, {vr(vB + 4 * ks, 4)}, {c}')
            if ks + LA < ks1:
                rd(ks + LA)
            if cs:
                for i in range(4):
                    a(f'v_dot2c_f32_bf16 v{cs + (i & 1)}, s{sONES}, v{sl + i}')

    CH = ((0, 7), (7, 14), (14, 21), (21, 28))

    def variants(self, c, f):
        a = self.a
        alt, dn = a.label('alt'), a.label('altdone')
        a(f's_cmp_eq_u32 s{sW}, {c}\ns_cbranch_scc1 {alt}')
        save = list(self.vm)
        f(False)
        a(f's_branch {dn}\n{alt}:')
        self.vm = save
        f(True)
        a(f'{dn}:')

    def cs_combine(self, val, off, lanes):
        a = self.a
        a(f's_mul_i32 s{sT[0]}, s{sW}, 384\ns_add_u32 s{sT[0]}, s{sT[0]}, {L_PART + off}')
        a(f'v_and_b32 v{vT[0]}, {lanes - 1}, v{vLANE}\nv_lshlrev_b32 v{vT[0]}, 2, v{vT[0]}\nv_add_u32 v{vT[1]}, s{sT[0]}, v{vT[0]}')
        a(f'ds_write_b32 v{vT[1]}, v{val}')
        a(f'v_add_u32 v{vT[0]}, {L_PART + off}, v{vT[0]}')
        a('s_waitcnt lgkmcnt(0)\ns_barrier')
        for i in range(4):
            a(f'ds_read_b32 v{vT[2 + i]}, v{vT[0]} offset:{384 * i}')
        a('s_waitcnt lgkmcnt(0)')
        a(f'v_add_f32 v{vT[2]}, v{vT[2]}, v{vT[3]}\nv_add_f32 v{vT[4]}, v{vT[4]}, v{vT[5]}\nv_add_f32 v{vT[2]}, v{vT[2]}, v{vT[4]}')
        a(f'v_subrev_u32 v{vT[0]}, {L_PART - L_CS}, v{vT[0]}')
        a(f'ds_write_b32 v{vT[0]}, v{vT[2]}')

    def stat32(self, st):
        L = []
        for o in (0, 1):
            L += [f'v_add_f32 v{st + o}, v{st + o}, v{st + o + 2}', f'v_add_f32 v{st + 4 + o}, v{st + 4 + o}, v{st + 6 + o}',
                  f'v_add_f32 v{st + 8 + o}, v{st + 8 + o}, v{st + 10 + o}', f'v_add_f32 v{st + 12 + o}, v{st + 12 + o}, v{st + 14 + o}']
        for o in (0, 1):
            L += [f'v_add_f32 v{st + o}, v{st + o}, v{st + 4 + o}', f'v_add_f32 v{st + 8 + o}, v{st + 8 + o}, v{st + 12 + o}']
        for o in (0, 1):
            L += [f'v_add_f32 v{st + o}, v{st + o}, v{st + 8 + o}']
        for o in (0, 1):
            L += [f'v_mov_b32 v{st + 2 + o}, v{st + o}']
        for o in (0, 1):
            L += [f'v_permlane32_swap_b32 v{st + o}, v{st + 2 + o}']
        for o in (0, 1):
            L += [f'v_add_f32 v{st + o}, v{st + o}, v{st + 2 + o}']
        return L

    def ln_lines(self, s, q, rs, nm=None):
        L = [f'v_mul_f32 v{s}, {f32(-1 / 448)}, v{s}', f'v_mul_f32 v{q}, {f32(1 / 448)}, v{q}', f'v_fma_f32 v{q}, -v{s}, v{s}, v{q}',
             f'v_max_f32 v{q}, 0, v{q}', f'v_add_f32 v{q}, {f32(1e-5)}, v{q}', f'v_rsq_f32 v{rs}, v{q}']
        if nm is not None:
            L.append(f'v_mul_f32 v{nm}, v{s}, v{rs}')
        return L

    def kv_addr(self, L):
        a = self.a
        a(f's_lshl_b32 s{sT[0]}, s{sW}, 8\ns_add_u32 s{sT[0]}, s{sT[0]}, {L_SCR}')
        a(f'v_and_b32 v{vT[0]}, 31, v{vLANE}\nv_cmp_eq_u32 s[{sT[4]}:{sT[5]}], 28, v{vT[0]}\nv_lshlrev_b32 v{vT[0]}, 2, v{vT[0]}')
        a(f'v_add_u32 v{vT[1]}, s{sT[0]}, v{vT[0]}')
        a(f'v_lshrrev_b32 v{vT[2]}, 5, v{vLANE}\nv_lshlrev_b32 v{vT[2]}, 4, v{vT[2]}')
        a(f'v_add_u32 v{vT[3]}, {L_CS}, v{vT[2]}\nv_add_u32 v{vT[2]}, s{sT[0]}, v{vT[2]}')
        a(f'v_add_u32 v{vT[0]}, {L_CS}, v{vT[0]}')
        a(f's_lshl_b32 s{sT[1]}, s{sJ}, 6\ns_add_u32 s{sT[1]}, s{sT[1]}, s{sTT}')
        a(f's_lshl_b32 s{sT[2]}, s{sT[1]}, 12\ns_add_u32 s{sT[2]}, s{sT[2]}, {WS_KV + L * 0x400000}')
        a(f's_lshl_b32 s{sT[1]}, s{sT[1]}, 7\ns_add_u32 s{sT[8]}, s{sT[1]}, {WS_FKV + L * 0x20000}')
        a(f's_lshl_b32 s{sT[3]}, s{sW}, 12\ns_add_u32 s{sT[3]}, s{sT[3]}, {L_SLOT + 8 * 4096}')
        a(f'v_add_u32 v{vT[5]}, s{sT[3]}, v{vL16}')

    def qkv(self, L):
        a = self.a
        RS, NM, TR, BG = self.vRS, self.vNM, self.vTR, self.vBG
        AF = self.AF
        if L == 0:
            kv = self.st_wkv(BG)
            rb = [vT[2 + q] for q in range(4)]
            a(f'v_bfe_u32 v{vT[0]}, v{vLANE}, 3, 2\nv_lshlrev_b32 v{vT[0]}, 10, v{vT[0]}\nv_and_b32 v{vT[1]}, 7, v{vLANE}')
            a(f'v_lshl_add_u32 v{vT[0]}, v{vT[1]}, 7, v{vT[0]}\nv_add_u32 v{vT[0]}, s{self.xs}, v{vT[0]}')
            a(f'v_bfe_u32 v{vT[1]}, v{vLANE}, 1, 3\nv_lshrrev_b32 v{vT[6]}, 5, v{vLANE}\nv_xor_b32 v{vT[1]}, v{vT[1]}, v{vT[6]}')
            for q in range(4):
                a(f'v_xor_b32 v{rb[q]}, {2 * q}, v{vT[1]}\nv_lshl_add_u32 v{rb[q]}, v{rb[q]}, 4, v{vT[0]}')
            a(f'v_add_u32 v{vT[7]}, s{self.xs}, v{vL16}')
            acc = 240
            for i in range(8):
                a(f'v_mov_b32 v{acc + i}, 0')
            a(f'v_and_b32 v{vT[0]}, 31, v{vLANE}\nv_lshlrev_b32 v{vT[6]}, 2, v{vT[6]}\nv_sub_u32 v{vT[0]}, v{vT[0]}, v{vT[6]}')
            for r in range(16):
                a(f'v_cmp_le_i32 s[{sCM + 2 * r}:{sCM + 2 * r + 1}], {(r & 3) + 8 * (r >> 2)}, v{vT[0]}')
            a('s_waitcnt lgkmcnt(0)')
            a(f's_add_u32 s{sTAG}, s{sTAG}, 1\ns_addc_u32 s{sTAG + 1}, s{sTAG + 1}, 0')

            def dots(cb):
                for r in range(vB + 16 * cb, vB + 16 * cb + 16):
                    a(f'v_dot2c_f32_bf16 v{acc + (r & 3)}, s{sONES}, v{r}\nv_dot2c_f32_bf16 v{acc + 4 + (r & 3)}, v{r}, v{r}')
            for cb in range(7):
                kv[cb]()
                self.wait(('x', cb))
                if cb == 6:
                    for rg in range(4):
                        a(f'ds_write_b128 v{vT[7]}, {vr(vB + 96 + 4 * rg, 4)} offset:{1024 * rg}')
                for q in range(4):
                    a(f'ds_read_b128 {vr(vB + 16 * cb + 4 * q, 4)}, v{rb[q]} offset:{4096 * (cb % 6)}')
                if cb:
                    a(f's_waitcnt lgkmcnt({8 if cb == 6 else 4})')
                    dots(cb - 1)
            a('s_waitcnt lgkmcnt(0)')
            dots(6)
            for o in (0, 4):
                a(f'v_add_f32 v{acc + o}, v{acc + o}, v{acc + o + 1}\nv_add_f32 v{acc + o + 2}, v{acc + o + 2}, v{acc + o + 3}')
                a(f'v_add_f32 v{acc + o}, v{acc + o}, v{acc + o + 2}')
                self.xhalf('v_add_f32', acc + o, acc + o + 1)
            a('\n'.join(self.ln_lines(acc, acc + 4, RS, NM)))
            self.stamp('x0stats')
            self.tr_base(TR, 8)
            cs = AF + 32
            for i in range(6):
                a(f'v_mov_b32 v{cs + i}, 0')
            wq = self.st_wq(BG, setup_v=False)
            a(f'v_and_b32 v{vT[4]}, 31, v{vLANE}\nv_mul_u32_u24 v{vT[4]}, 896, v{vT[4]}\nv_lshrrev_b32 v{vT[5]}, 5, v{vLANE}')
            a(f'v_lshl_add_u32 v{vT[6]}, v{vT[5]}, 3, v{vT[4]}')
            a(f's_mul_i32 s{sT[6]}, s{sTB}, 28672\ns_mul_i32 s{sT[5]}, s{sFS}, 112\ns_add_u32 s{sT[6]}, s{sT[6]}, s{sT[5]}')
            a(f's_lshl_b32 s{sT[5]}, s{sFT}, 6\ns_add_u32 s{sT[6]}, s{sT[6]}, s{sT[5]}')

            def bg(ks):
                if ks < 14:
                    if ks % 2 == 0:
                        kv[7 + ks // 2]()
                elif ks < 18:
                    for f in wq[2 * (ks - 14):2 * (ks - 13)]:
                        f()
                elif 21 <= ks < 25:
                    m = ks - 21
                    self.iss(f'buffer_load_dwordx2 {vr(vRES + 8 + 2 * m, 2)}, v{vT[6]}, {srd(sX)}, s{sT[6]} offen offset:{16 * m}')
            for c, (k0, k1) in enumerate(self.CH):
                if c == 0:
                    self.wait(('kv', 6))
                    a('s_barrier')
                    self.stamp('kv6')
                if c == 2:
                    self.wait(('kv', 13))
                    self.stamp('kv13')
                    sk = a.label('noxid')
                    a(f's_cmp_lg_u32 s{sW}, 3\ns_cbranch_scc1 {sk}\ns_getreg_b32 s{sT[0]}, hwreg(HW_REG_XCC_ID, 0, 4)')
                    a(f'v_mov_b32 v{vT[2]}, s{sTAG}\nv_mov_b32 v{vT[3]}, s{sTAG + 1}\nv_mov_b32 v{vT[4]}, s{sT[0]}\nv_mov_b32 v{vT[5]}, 0')
                    a(f's_lshl_b32 s{sT[1]}, s{sRB}, 8\ns_lshl_b32 s{sT[2]}, s{sJ}, 4\ns_add_u32 s{sT[1]}, s{sT[1]}, s{sT[2]}')
                    a(f's_add_u32 s{sT[1]}, s{sT[1]}, {WS_XID}\ns_mov_b64 exec, 1')
                    a(f'buffer_store_dwordx4 {vr(vT[2], 4)}, v{vT[5]}, {srd(sWS)}, s{sT[1]} offen sc1')
                    a(f's_mov_b64 exec, -1\n{sk}:\ns_barrier')
                if c == 3:
                    self.repack_dma()
                self.variants(c, lambda on: self.kv_steps(k0, k1, cs=(cs, cs + 2) if on else None, bg=bg))
            for o in (0, 2):
                a(f'v_add_f32 v{cs + o}, v{cs + o}, v{cs + o + 1}')
                self.xhalf('v_add_f32', cs + o, cs + o + 1)
            a(f'v_cndmask_b32 v{cs}, v{cs}, v{cs + 2}, s[{sHI}:{sHI + 1}]')
            self.cs_combine(cs, 128, 64)
            self.kv_addr(L)
        else:
            a('s_barrier')
            self.tr_base(TR, 8)
            self.kv_addr(L)
            a(f'v_lshlrev_b32 v{vT[6]}, 3, v{vLANE}')
            a(f's_lshl_b32 s{sT[0]}, s{sTT}, 7\ns_add_u32 s{sT[0]}, s{sT[0]}, {WS_FX2}')
            a(f'v_and_b32 v{vT[7]}, 31, v{vLANE}\nv_lshlrev_b32 v{vT[7]}, 4, v{vT[7]}')
            a(f'v_lshrrev_b32 v{vT[4]}, 5, v{vLANE}\nv_lshl_add_u32 v{vT[7]}, v{vT[4]}, 11, v{vT[7]}')
            a(f's_mul_i32 s{sG0}, s{sTT}, 28672\ns_add_u32 s{sG0}, s{sG0}, {WS_XF}')
            a(f's_lshl_b32 s{sG1}, s{sTT}, 12\ns_add_u32 s{sG1}, s{sG1}, {WS_ST2}')
            wq = self.st_pq()
            if self.opt.get('pq', 0) == 0:
                for f in wq:
                    f()
            self.poll(vT[6], sT[0], '0xffff', RS)
            a(f's_add_u32 s{sTAG}, s{sTAG}, 1\ns_addc_u32 s{sTAG + 1}, s{sTAG + 1}, 0')
            self.stamp('x2polled')

            def ldx(ks):
                if ks % 4 == 0 and ks:
                    a(f's_add_u32 s{sG0}, s{sG0}, 4096')
                self.iss(f'buffer_load_dwordx4 {vr(vB + 4 * ks, 4)}, v{vL16}, {srd(sWS)}, s{sG0} offen offset:{(ks % 4) * 1024} sc1', ('x', ks))
            PRE = self.PRE
            st = self.ACQ
            ops = [lambda ks=ks: ldx(ks) for ks in range(28)]
            for i in range(4):
                ops.insert(8 + 3 * i, lambda i=i: self.iss(
                    f'buffer_load_dwordx4 {vr(st + 4 * i, 4)}, v{vT[7]}, {srd(sWS)}, s{sG1} offen offset:{512 * i} sc1', 'stat'))
            for i in range(PRE):
                ops.pop(0)()
            fill = self.stat32(st) + self.ln_lines(st, st + 1, RS, NM)
            fill += [f'ds_write_b32 v{vT[1]}, v{RS}', f'ds_write_b32 v{vT[1]}, v{NM} offset:128']

            def bg(ks):
                if ops:
                    ops.pop(0)()
                if ks in (2, 4, 6, 8) and ops:
                    ops.pop(0)()
                if ks >= 21 and self.opt.get('pq', 0) == 1:
                    wq[ks - 21]()
                if ks >= 16:
                    assert self.vmn('stat') is None
                    for _ in range(3):
                        if len(fill) > 2:
                            a(fill.pop(0))
            self.kv_steps(0, 28, bg=bg, vtag='x')
            assert len(fill) == 2 and not ops
        self.stamp('kvloop')
        T = AF
        a(f'ds_write_b32 v{vT[1]}, v{RS}\nds_write_b32 v{vT[1]}, v{NM} offset:128')
        for m in range(4):
            a(f'ds_read_b128 {vr(T + 4 * m, 4)}, v{vT[3]} offset:{128 + 32 * m}')
        a(f'ds_read_b32 v{vT[4]}, v{vT[0]} offset:256')
        for m in range(4):
            a(f'ds_read_b128 {vr(T + 16 + 4 * m, 4)}, v{vT[2]} offset:{128 + 32 * m}')
        for m in range(4):
            a(f'ds_read_b128 {vr(self.ACQ + 4 * m, 4)}, v{vT[2]} offset:{32 * m}')
        lo, hi = 'op_sel_hi:[1,0]', 'op_sel:[0,1] op_sel_hi:[1,1]'
        for p in range(8):
            a(f'v_pk_mul_f32 {vr(self.ACK + 2 * p, 2)}, {vr(self.ACK + 2 * p, 2)}, {vr(RS, 2)} op_sel_hi:[1,0]')
        a('s_waitcnt lgkmcnt(9)')
        for p in range(8):
            a(f'v_pk_fma_f32 {vr(self.ACK + 2 * p, 2)}, {vr(T + 2 * p, 2)}, {vr(RS, 2)}, {vr(self.ACK + 2 * p, 2)} op_sel:[0,1,0] op_sel_hi:[1,1,1]')
        for p in range(8):
            a(f'v_cvt_pk_bf16_f32 v{self.ACK + p}, v{self.ACK + 2 * p}, v{self.ACK + 2 * p + 1}')
        a(f's_mov_b32 exec_lo, 0\nv_mov_b32 v{self.ACK + 6}, 0\nv_mov_b32 v{self.ACK + 7}, 0\ns_mov_b32 exec_lo, -1')
        for i in range(2):
            self.iss(f'buffer_store_dwordx4 {vr(self.ACK + 4 * i, 4)}, v{vL16}, {srd(sWS)}, s{sT[2]} offen offset:{1024 * i} sc1')
        a('s_waitcnt lgkmcnt(4)')
        for p in range(8):
            a(f'v_pk_mul_f32 {vr(T + 16 + 2 * p, 2)}, {vr(T + 16 + 2 * p, 2)}, {vr(vT[4], 2)} op_sel_hi:[1,0]')
        a('s_waitcnt lgkmcnt(0)')
        for p in range(8):
            a(f'v_pk_fma_f32 {vr(T + 16 + 2 * p, 2)}, {vr(self.ACV + 2 * p, 2)}, {vr(self.ACQ + 2 * p, 2)}, {vr(T + 16 + 2 * p, 2)}')
        for p in range(8):
            a(f'v_cvt_pk_bf16_f32 v{self.ACV + p}, v{T + 16 + 2 * p}, v{T + 16 + 2 * p + 1}')
        a(f's_mov_b64 exec, s[{sT[4]}:{sT[5]}]')
        for p in range(8):
            a(f'v_mov_b32 v{self.ACV + p}, s{sONES}')
        a('s_mov_b64 exec, -1')
        for i in range(2):
            self.iss(f'buffer_store_dwordx4 {vr(self.ACV + 4 * i, 4)}, v{vL16}, {srd(sWS)}, s{sT[2]} offen offset:{2048 + 1024 * i} sc1', 'kvst')
        for i in range(2):
            a(f'ds_write_b128 v{vT[5]}, {vr(self.ACK + 4 * i, 4)} offset:{1024 * i}')
            a(f'ds_write_b128 v{vT[5]}, {vr(self.ACV + 4 * i, 4)} offset:{2048 + 1024 * i}')
        a(f'v_add_u32 v{TR}, {L_B}, v{TR}' if L == 0 else f'v_add_u32 v{TR}, {L_B}, v{vL16}')
        self.stamp('kvepi')
        CQ = self.ACK + 8
        if L == 0:
            cs = AF + 36
            a('s_waitcnt vmcnt(4)')
            self.vm = self.vm[-4:]
            self.repack_store(AF - 28 - 4 if False else self.RPT)
            self.wait(None, 0)
            a('s_barrier')
            self.stamp('wq')
            for c, (k0, k1) in enumerate(self.CH):
                self.variants(c, lambda on: self.q_steps(k0, k1, cs=cs if on else None))
            self.flag(sT[8], always_sc1=True)
            self.repack_arrive()
            self.stamp('qloop')
            a(f'v_add_f32 v{cs}, v{cs}, v{cs + 1}')
            self.xhalf('v_add_f32', cs, cs + 1)
            self.cs_combine(cs, 0, 32)
            a(f'v_lshrrev_b32 v{vT[2]}, 5, v{vLANE}\nv_lshlrev_b32 v{vT[2]}, 4, v{vT[2]}\nv_add_u32 v{vT[3]}, {L_CS}, v{vT[2]}')
            for m in range(4):
                a(f'ds_read_b128 {vr(T + 4 * m, 4)}, v{vT[3]} offset:{32 * m}')
            CQ = T
        else:
            a('s_waitcnt lgkmcnt(0)')
            for m in range(4):
                a(f'ds_read_b128 {vr(248 + 4 * m if m < 2 else self.ACV + 8 + 4 * (m - 2), 4)}, v{vT[3]} offset:{32 * m}')
            self.wait('wq', 0)
            a('s_barrier')
            self.q_steps(0, 28, packed=True)
            self.flag(sT[8], always_sc1=True, after='kvst')
            self.stamp('qloop')
            a('s_barrier')
            CQ = None
        self.touch(WS_OF, 28672, 14)
        c2 = f32(28 ** -0.5 * math.log2(math.e))
        a(f'v_mul_f32 v{RS}, {c2}, v{RS}\nv_mul_f32 v{NM}, {c2}, v{NM}')
        for p in range(8):
            a(f'v_pk_mul_f32 {vr(self.ACQ + 2 * p, 2)}, {vr(self.ACQ + 2 * p, 2)}, {vr(RS, 2)} op_sel_hi:[1,0]')
        a('s_waitcnt lgkmcnt(0)')
        for p in range(8):
            src = CQ + 2 * p if CQ is not None else (248 + 2 * p if p < 4 else self.ACV + 8 + 2 * (p - 4))
            a(f'v_pk_fma_f32 {vr(self.ACQ + 2 * p, 2)}, {vr(src, 2)}, {vr(RS, 2)}, {vr(self.ACQ + 2 * p, 2)} op_sel:[0,1,0] op_sel_hi:[1,1,1]')
        for p in range(8):
            a(f'v_cvt_pk_bf16_f32 v{self.aQ + p}, v{self.ACQ + 2 * p}, v{self.ACQ + 2 * p + 1}')
        a(f's_mov_b32 exec_lo, 0\nv_mov_b32 v{self.aQ + 6}, 0\nv_mov_b32 v{self.aQ + 7}, 0\ns_mov_b32 exec_lo, -1')
        self.stamp('qdone')

    aQ, aOA, aNM, aS, aP, aK, aV, aM, aAD, aOB = 56, 64, 80, (96, 112), (128, 136), 144, 208, 232, 236, 240

    def att_tools(self, first, stride, nmax, sMasked):
        a = self.a
        Q, S, K, V, AD = self.aQ, self.aS, self.aK, self.aV, self.aAD
        B0 = 4096 * (nmax - 1) if stride < 0 else 0

        def rdk(i):
            o = B0 + i * stride
            a(f'ds_read_b128 {vr(K + 8 * i, 4)}, v{AD} offset:{o}\nds_read_b128 {vr(K + 8 * i + 4, 4)}, v{AD} offset:{o + 1024}')

        def rdv(i):
            o = B0 + i * stride + 2048
            d = V + 8 * (i % 3)
            a(f'ds_read_b128 {vr(d, 4)}, v{AD} offset:{o}\nds_read_b128 {vr(d + 4, 4)}, v{AD} offset:{o + 1024}')

        def qk(i, c):
            s = S[i & 1]
            return [f'{MF32} {vr(s, 16)}, {vr(K + 8 * i, 4)}, {vr(Q, 4)}, {c}',
                    f'{MF32} {vr(s, 16)}, {vr(K + 8 * i + 4, 4)}, {vr(Q + 4, 4)}, {vr(s, 16)}']

        def mask():
            sk = a.label('nomask')
            big = self.aM + 1
            if sMasked is not None:
                a(f's_cmp_eq_u32 s{sMasked}, 0\ns_cbranch_scc1 {sk}')
            for r in range(16):
                m = f's[{sCM + 2 * r}:{sCM + 2 * r + 1}]'
                if first:
                    a(f'v_cndmask_b32 v{S[0] + r}, v{big}, v{S[0] + r}, {m}')
                else:
                    a(f'v_cndmask_b32 v{S[0] + r}, v{S[0] + r}, v{big}, {m}')
            a(f'{sk}:')
        return B0, rdk, rdv, qk, mask

    def pass1(self, first, stride, nmax, sCnt, sMasked, kwait):
        a = self.a
        S, M = self.aS, self.aM
        B0, rdk, rdv, qk, mask = self.att_tools(first, stride, nmax, sMasked)
        kwait(0)
        a('\n'.join(qk(0, '0')))
        ex = a.label('p1x')
        for i in range(nmax):
            mx = [f'v_max3_f32 v{M}, v{S[i & 1] + 2 * k}, v{S[i & 1] + 2 * k + 1}, v{M}' for k in range(8)]
            if i + 1 < nmax:
                kwait(i + 1)
                m = qk(i + 1, '0')
                if i == 0:
                    a('\n'.join(m)); mask(); a('\n'.join(mx))
                else:
                    a('\n'.join([m[0]] + mx[:4] + [m[1]] + mx[4:]))
                a(f's_cmp_eq_u32 s{sCnt}, {i + 1}\ns_cbranch_scc1 {ex}')
            else:
                a('\n'.join(mx))
        a(f'{ex}:')
        self.xhalf('v_max_f32', M, M + 3)

    def pass2(self, first, stride, nmax, sCnt, sMasked, kwait, bg=()):
        a = self.a
        S, V, P, NMB = self.aS, self.aV, self.aP, self.aNM
        B0, rdk, rdv, qk, mask = self.att_tools(first, stride, nmax, sMasked)
        O = self.aOA if first else self.aOB
        bg = list(bg)

        def pv(i):
            d, p = V + 8 * (i % 3), P[i & 1]
            c = vr(O, 16) if i else ('0' if first else vr(self.aOA, 16))
            return [f'{MF32} {vr(O, 16)}, {vr(d, 4)}, {vr(p, 4)}, {c}', f'{MF32} {vr(O, 16)}, {vr(d + 4, 4)}, {vr(p + 4, 4)}, {vr(O, 16)}']
        kwait(0)
        a('\n'.join(qk(0, vr(NMB, 16))))
        done = a.label('p2x')
        for i in range(nmax):
            s, p = S[i & 1], P[i & 1]
            ex = [f'v_exp_f32 v{s + r}, v{s + r}' for r in range(16)]
            cv = [f'v_cvt_pk_bf16_f32 v{p + k}, v{s + 2 * k}, v{s + 2 * k + 1}' for k in range(8)]
            m = []
            if i + 1 < nmax:
                kwait(i + 1)
                m += qk(i + 1, vr(NMB, 16))
            if i == 0:
                a('\n'.join(m))
                rdv(0)
                if nmax > 1:
                    rdv(1)
                for f in bg[:1]:
                    f()
                mask()
                parts = [ex[:4], ex[4:8] + cv[:2], ex[8:12] + cv[2:4], ex[12:] + cv[4:]]
                for k, pt in enumerate(parts):
                    a('\n'.join(pt))
                    for f in bg[1 + 2 * k:3 + 2 * k]:
                        f()
                bg = bg[9:]
            else:
                pm = pv(i - 1)
                parts = [ex[:4], ex[4:8] + cv[:2], ex[8:12] + cv[2:4], ex[12:] + cv[4:]]
                mm = m + pm if m else [pm[0], None, pm[1], None]
                for k in range(4):
                    if mm[k] is pm[0]:
                        a(f's_waitcnt lgkmcnt({2 if i < nmax else 0})')
                    if mm[k]:
                        a(mm[k])
                    if k == 3 and i + 1 < nmax:
                        rdv(i + 1)
                    a('\n'.join(parts[k]))
                    for _ in range(2):
                        if bg and i < 4:
                            bg.pop(0)()
            if i + 1 < nmax:
                st = a.label('p2s')
                a(f's_cmp_eq_u32 s{sCnt}, {i + 1}\ns_cbranch_scc1 {st}')
                self.cold.append([f'{st}:', 's_waitcnt lgkmcnt(0)'] + pv(i) + [f's_branch {done}'])
            else:
                a('s_waitcnt lgkmcnt(0)\n' + '\n'.join(pv(i)))
        assert not bg
        a(f'{done}:')

    def set_nm(self):
        for r in range(0, 16, 2):
            self.a(f'v_pk_mul_f32 {vr(self.aNM + r, 2)}, {vr(self.aM, 2)}, -1.0 op_sel_hi:[0,0]')

    def attention(self, L):
        a = self.a
        M, AD, OA, OB = self.aM, self.aAD, self.aOA, self.aOB
        B0, rdk, _, _, _ = self.att_tools(True, -4096, 4, None)
        a(f's_lshl_b32 s{sT[6]}, s{sW}, 12\ns_add_u32 s{sT[6]}, s{sT[6]}, {L_SLOT + 8 * 4096 - B0}\ns_add_u32 s{sT[7]}, s{sW}, 1')
        a(f'v_add_u32 v{AD}, s{sT[6]}, v{vL16}')
        for i in range(4):
            rdk(i)
        a(f'v_mov_b32 v{M + 1}, {f32(-1e30)}\nv_mov_b32 v{M}, v{M + 1}')
        self.pass1(True, -4096, 4, sT[7], None, lambda i: a(f's_waitcnt lgkmcnt({6 - 2 * i})'))
        self.set_nm()
        if L == 0:
            self.repack_ask(vT[9], vT[6])
        a('s_waitcnt lgkmcnt(0)')
        self.pass2(True, -4096, 4, sT[7], None, lambda i: None)
        self.stamp('segA')
        h01, hdone = a.label('h01'), a.label('hdone')
        if L == 0:
            self.wait('pkf')
            self.check(vT[9], sT[5], vT[6], '0x3fff3fff')
            a('s_mov_b64 exec, -1')
        a(f's_cmp_lt_u32 s{sW}, 2\ns_cbranch_scc1 {h01}')
        if L == 0:
          a(f's_mul_i32 s{sG0}, s{sJ}, 100352\ns_and_b32 s{sG1}, s{sW}, 1\ns_lshl_b32 s{sG1}, s{sG1}, 10\ns_add_u32 s{sG0}, s{sG0}, s{sG1}')
        for u in range(25 if L == 0 else 0):
            if u == 24:
                a(f's_sub_u32 s{sG0}, s{sG0}, s{sG1}\ns_mov_b32 s{sG1}, 0')
            self.dma(sWS, vL16, sG0, WS_PK1 + 2048 * u, sG1, L_A + 2048 * u, count=False)
        a(f's_branch {hdone}\n{h01}:')
        a(f's_add_u32 s{sT[0]}, s{sRB}, s{sW}\ns_cmp_lt_u32 s{sT[0]}, 2\ns_cbranch_scc1 {hdone}')
        a(f's_lshl_b32 s{sT[0]}, s{sT[0]}, 2\ns_lshl_b32 s{sT[2]}, s{sJ}, 6\ns_add_u32 s{sT[0]}, s{sT[0]}, s{sT[2]}\ns_sub_u32 s{sT[0]}, s{sT[0]}, 8')
        a(f's_lshl_b32 s{sT[2]}, s{sT[0]}, 7\ns_add_u32 s{sT[2]}, s{sT[2]}, {WS_FKV + L * 0x20000}')
        a(f's_lshl_b32 s{sT[0]}, s{sT[0]}, 12\ns_add_u32 s{sT[0]}, s{sT[0]}, {WS_KV + L * 0x400000}')
        a(f's_lshl_b32 s{sT[1]}, s{sW}, 14\ns_add_u32 s{sT[1]}, s{sT[1]}, {L_SLOT}')
        a(f'v_lshlrev_b32 v{vT[0]}, 7, v{vLANE}')
        save = list(self.vm)
        self.poll(vT[0], sT[2], '15', vT[2])
        self.stamp('halopolled')
        for i in range(16):
            self.dma(sWS, vL16, sT[0], 1024 * i, sT[1], 1024 * i, ' sc1')
        self.vm = save
        a(f's_waitcnt vmcnt(0)\n{hdone}:')
        a(f's_mul_i32 s{sT[0]}, s{sJ}, 7\nv_lshrrev_b32 v{vT[2]}, 5, v{vLANE}\nv_add_u32 v{vT[2]}, s{sT[0]}, v{vT[2]}')
        a(f'v_and_b32 v{vT[3]}, 1, v{vT[2]}\nv_lshrrev_b32 v{vT[2]}, 1, v{vT[2]}\nv_lshlrev_b32 v{vT[2]}, 9, v{vT[2]}')
        a(f'v_lshl_add_u32 v{vT[2]}, v{vT[3]}, 3, v{vT[2]}\nv_and_b32 v{vT[3]}, 31, v{vLANE}\nv_lshl_add_u32 v{vT[5]}, v{vT[3]}, 4, v{vT[2]}')
        a(f's_mul_i32 s{sT[0]}, s{sTT}, 28672\ns_add_u32 s{sT[0]}, s{sT[0]}, {WS_OF}')
        a(f's_lshl_b32 s{sT[1]}, s{sTT}, 7\ns_lshl_b32 s{sT[3]}, s{sJ}, 3\ns_add_u32 s{sT[1]}, s{sT[1]}, s{sT[3]}\ns_add_u32 s{sT[1]}, s{sT[1]}, {WS_FO}')
        a(f's_cmp_ge_u32 s{sRB}, 2\ns_cselect_b32 s{sT[8]}, 1, 0\ns_cselect_b32 s{sT[6]}, s{sW}, 4')
        a(f's_sub_u32 s{sT[7]}, 8, s{sT[6]}\ns_lshl_b32 s{sT[6]}, s{sT[6]}, 12\ns_add_u32 s{sT[6]}, s{sT[6]}, {L_SLOT}')
        a(f'v_add_u32 v{AD}, s{sT[6]}, v{vL16}\ns_mov_b32 s{sT[9]}, 0')
        if L == 0:
            for p in range(8):
                src = vRES + 8 + p
                a(f'v_lshlrev_b32 v{vRES + 2 * p}, 16, v{src}\nv_and_b32 v{vRES + 2 * p + 1}, 0xffff0000, v{src}')
            a(f's_lshl_b32 s{sT[4]}, s{sRB}, 8\ns_add_u32 s{sT[4]}, s{sT[4]}, {WS_XID}')
        bg = self.bg_copy(L)
        a('s_barrier')
        self.stamp('halo')
        sk, jn, again, redo = a.label('nosegb'), a.label('segbdone'), a.label('segb'), a.label('redo')
        a(f's_cmp_eq_u32 s{sRB}, 0\ns_cbranch_scc1 {sk}')
        _, rdk, _, _, _ = self.att_tools(False, 4096, 8, sT[8])
        for i in range(7):
            rdk(i)

        def kw(i):
            if i == 0:
                a('s_waitcnt lgkmcnt(12)')
            elif i == 1:
                rdk(7)
                a('s_waitcnt lgkmcnt(12)')
            elif i == 2:
                a('s_waitcnt lgkmcnt(4)')
        save = list(self.vm)
        self.pass2(False, 4096, 8, sT[7], sT[8], kw, bg)
        a(f'v_cmp_nle_f32 vcc, v{OB + 12}, v{M + 1} src0' if False else f'v_mov_b32 v{vT[0]}, {f32(2.0 ** self.LIM)}')
        a(f'v_cmp_nle_f32 vcc, v{OB + 12}, v{vT[0]}\ns_and_b64 vcc, vcc, s[{sHI}:{sHI + 1}]\ns_cbranch_scc1 {redo}\n{jn}:')
        after = list(self.vm)
        hot, self.a = self.a, Asm()
        self.a.uid = hot.uid + 100000 * (L + 1)
        c = self.a
        c(f'{sk}:')
        self.vm = save
        for f in (self.bg_copy(L) if True else []):
            f()
        for r in range(16):
            c(f'v_mov_b32 v{OB + r}, v{OA + r}')
        c(f's_branch {jn}')
        c(f'{redo}:\ns_waitcnt lgkmcnt(0)\nv_mov_b32 v{M + 2}, v{M}')
        self.pass1(False, 4096, 8, sT[7], sT[8], lambda i: None)
        c(f'v_sub_f32 v{M + 2}, v{M + 2}, v{M}\nv_exp_f32 v{M + 2}, v{M + 2}')
        self.set_nm()
        for r in range(16):
            c(f'v_mul_f32 v{OA + r}, v{OA + r}, v{M + 2}')
        self.pass2(False, 4096, 8, sT[7], sT[8], lambda i: None)
        c(f's_branch {jn}')
        self.cold.append(c.lines)
        self.a = a = hot
        self.vm = after
        t = vT[0]
        a(f'v_rcp_f32 v{t}, v{OB + 12}')
        a(f'v_mov_b32 v{vT[1]}, v{t}\nv_permlane32_swap_b32 v{vT[1]}, v{t}')
        if L == 0:
            self.wait('xid')
            self.check(vL16, sT[4], vT[6], '0xffff', 4)
            a(f's_getreg_b32 s{sT[3]}, hwreg(HW_REG_XCC_ID, 0, 4)\nv_cmp_ne_u32 vcc, s{sT[3]}, v{vT[8]}\ns_mov_b64 exec, -1')
            a(f's_cmp_eq_u64 vcc, 0\ns_cselect_b32 s{sFAST}, {0 if self.force_slow else 1}, 0')
        for p in range(8):
            a(f'v_pk_mul_f32 {vr(OB + 2 * p, 2)}, {vr(OB + 2 * p, 2)}, {vr(t, 2)} op_sel_hi:[1,0]')
        for p in range(8):
            a(f'v_cvt_pk_bf16_f32 v{OB + p}, v{OB + 2 * p}, v{OB + 2 * p + 1}')
        st = [f'buffer_store_dwordx2 {vr(OB + 2 * m, 2)}, v{vT[5]}, {srd(sWS)}, s{sT[0]} offen offset:{512 * m}' for m in range(4)]
        self.stamp('segB')
        self.stores(st[:3] + ['s_mov_b32 exec_hi, 0', st[3], 's_mov_b32 exec_hi, -1'])
        self.flag(sT[1])
        self.stamp('attn')
        if L == 0:
            sk = a.label('nocs1')
            T = self.aK
            a(f's_cmp_lg_u32 s{sW}, 3\ns_cbranch_scc1 {sk}')
            a(f's_mul_i32 s{sT[0]}, s{sJ}, 448\ns_add_u32 s{sT[0]}, s{sT[0]}, {WS_CP1}\ns_mov_b64 exec, 0xfffffff')
            for i in range(14):
                a(f's_add_u32 s{sT[1]}, s{sT[0]}, {7168 * i}\nbuffer_load_dwordx4 {vr(T + 4 * i, 4)}, v{vL16}, {srd(sWS)}, s{sT[1]} offen sc1')
            a(f'v_add_u32 v{vT[0]}, {L_CS1}, v{vL16}')
            for i in range(1, 14):
                a(f's_waitcnt vmcnt({13 - i})')
                for k in (0, 2):
                    a(f'v_pk_add_f32 {vr(T + k, 2)}, {vr(T + k, 2)}, {vr(T + 4 * i + k, 2)}')
            a(f'ds_write_b128 v{vT[0]}, {vr(T, 4)}\ns_mov_b64 exec, -1\ns_waitcnt lgkmcnt(0)\n{sk}:')
        a('s_barrier')

    def w2_stream(self):
        w2 = self.st_pack(WS_PK2, 28, lambda i: ar(4 * i, 4))
        return [w2[2 * (7 * c + q) + b] for part in (range(4), range(4, 7)) for c in range(4) for q in part for b in range(2)]

    def touch_w1(self, part):
        a = self.a
        a(f's_and_b32 s{sT[10]}, s{sRB}, 1\ns_lshl_b32 s{sT[10]}, s{sT[10]}, 2\ns_add_u32 s{sT[10]}, s{sT[10]}, s{sW}')
        a(f's_mul_i32 s{sT[10]}, s{sT[10]}, 6272\ns_mul_i32 s{sT[11]}, s{sJ}, 100352\ns_add_u32 s{sT[10]}, s{sT[10]}, s{sT[11]}')
        a(f's_add_u32 s{sT[10]}, s{sT[10]}, {WS_PK1 + 50176 * part}')
        self.touch_go(sWS, 49, 128)

    def bg_copy(self, L):
        bg = [lambda: self.touch(WS_X1F, 28672, 14), lambda: self.touch(WS_ST1, 4096, 2)]
        if L == 0:
            bg.append(lambda: (self.a('s_mov_b64 exec, 0xffff'),
                               self.iss(f'buffer_load_dwordx4 {vr(vT[6], 4)}, v{vL16}, {srd(sWS)}, s{sT[4]} offen sc1', 'xid'),
                               self.a('s_mov_b64 exec, -1')))
            bg += self.st_pack(WS_PKO, 7, wo_frag)
            bg += self.w2_stream()[:self.opt.get('w2a', 14)]
        if self.opt.get('t1', 1):
            bg.append(lambda: self.touch_w1(1))
        return bg

    RACC, RSUM = 56, 184

    def red_write(self, b):
        a = self.a
        a(f's_xor_b32 s{sT[0]}, s{sW}, {b}\ns_mul_i32 s{sT[0]}, s{sT[0]}, 12288\ns_add_u32 s{sT[0]}, s{sT[0]}, {L_B + 4096 * (b - 1)}')
        a(f'v_add_u32 v{vT[0]}, s{sT[0]}, v{vL16}')
        return [f'ds_write_b128 v{vT[0]}, {vr(self.RACC + 16 * b + 4 * q, 4)} offset:{1024 * q}' for q in range(4)]

    def red_addr(self, kind):
        a = self.a
        t, h = vT[5], vT[2]
        a(f'v_and_b32 v{t}, 31, v{vLANE}\nv_lshrrev_b32 v{h}, 5, v{vLANE}')
        a(f's_mul_i32 s{sG0}, s{sFS}, 7\ns_lshl_b32 s{sT[2]}, s{sFT}, 2\ns_add_u32 s{sG0}, s{sG0}, s{sT[2]}')
        A0 = vT[3]
        if kind == 'x1':
            a(f'v_lshrrev_b32 v{A0}, 4, v{t}\nv_mul_u32_u24 v{A0}, 14336, v{A0}\nv_and_b32 v{vT[4]}, 15, v{t}\nv_lshl_add_u32 v{A0}, v{vT[4]}, 4, v{A0}')
            sh, base = 8, WS_X1F
        elif kind == 'x2':
            a(f'v_lshlrev_b32 v{A0}, 4, v{t}')
            sh, base = 9, WS_XF
        else:
            a(f'v_mul_u32_u24 v{A0}, 896, v{t}')
            sh, base = 4, 0
        a(f'v_lshl_add_u32 v{A0}, v{h}, 3, v{A0}')
        a(f's_lshl_b32 s{sG0}, s{sG0}, {sh}\ns_mul_i32 s{sT[2]}, s{sTB}, 28672\ns_add_u32 s{sG0}, s{sG0}, s{sT[2]}\ns_add_u32 s{sG0}, s{sG0}, {base}')
        a(f'v_lshlrev_b32 v{t}, 4, v{t}')
        if kind != 'out':
            flagb, stb = (WS_FX1, WS_ST1) if kind == 'x1' else (WS_FX2, WS_ST2)
            a(f's_lshl_b32 s{sG1}, s{sTB}, 12\ns_lshl_b32 s{sT[3]}, s{sFS}, 9\ns_add_u32 s{sG1}, s{sG1}, s{sT[3]}')
            a(f's_lshl_b32 s{sT[3]}, s{sFT}, 3\ns_add_u32 s{sG1}, s{sG1}, s{sT[3]}\ns_add_u32 s{sG1}, s{sG1}, {stb}')
            a(f's_lshl_b32 s{sT[9]}, s{sTB}, 7\ns_lshl_b32 s{sT[2]}, s{sFS}, 4\ns_add_u32 s{sT[9]}, s{sT[9]}, s{sT[2]}')
            a(f's_add_u32 s{sT[9]}, s{sT[9]}, s{sT[3]}\ns_add_u32 s{sT[9]}, s{sT[9]}, {flagb}')
        a(f's_mul_i32 s{sT[2]}, s{sW}, 12288\ns_add_u32 s{sT[2]}, s{sT[2]}, {L_B}\nv_add_u32 v{vT[6]}, s{sT[2]}, v{vL16}')
        a(f's_sub_u32 s{sT[4]}, s{sFT}, 1\ns_mov_b32 s{sT[5]}, s{sT[4]}')
        a(f'v_and_b32 v{vT[7]}, 3, v{vLANE}\nv_lshlrev_b32 v{vT[7]}, 3, v{vT[7]}\nv_bfe_u32 v{vT[1]}, v{vLANE}, 2, 1\nv_lshl_add_u32 v{vT[7]}, v{vT[1]}, 7, v{vT[7]}')
        a(f's_andn2_b32 s{sT[1]}, s{sTB}, 1\ns_lshl_b32 s{sT[1]}, s{sT[1]}, 7\ns_lshl_b32 s{sT[2]}, s{sW}, 5\ns_add_u32 s{sT[1]}, s{sT[1]}, s{sT[2]}')

    def red_tail(self, kind, w1):
        a = self.a
        R, SM = self.RACC, self.RSUM
        A0, t = vT[3], vT[5]
        a('\n'.join(w1))
        for p in range(8):
            a(f'v_pk_add_f32 {vr(R + 2 * p, 2)}, {vr(R + 2 * p, 2)}, {vr(SM + 2 * p, 2)}')
        a('s_waitcnt lgkmcnt(0)\ns_barrier')
        for i in range(4):
            a(f'ds_read_b128 {vr(SM + 4 * i, 4)}, v{vT[6]} offset:{1024 * i}')
        if kind == 'x1':
            for p in range(8):
                a(f'v_pk_add_f32 {vr(R + 2 * p, 2)}, {vr(R + 2 * p, 2)}, {vr(vRES + 2 * p, 2)}')
        else:
            for p in range(8):
                a(f'v_pk_fma_f32 {vr(R + 2 * p, 2)}, {vr(R + 2 * p, 2)}, {vr(vR1 - 1, 2)}, {vr(vRES + 2 * p, 2)} op_sel:[0,1,0] op_sel_hi:[1,1,1]')
        PK = R + 32
        for q in range(4):
            a(f's_waitcnt lgkmcnt({3 - q})')
            for p in (2 * q, 2 * q + 1):
                if kind == 'x1':
                    a(f'v_pk_add_f32 {vr(R + 2 * p, 2)}, {vr(R + 2 * p, 2)}, {vr(SM + 2 * p, 2)}')
                else:
                    a(f'v_pk_fma_f32 {vr(R + 2 * p, 2)}, {vr(SM + 2 * p, 2)}, {vr(vR1 - 1, 2)}, {vr(R + 2 * p, 2)} op_sel:[0,1,0] op_sel_hi:[1,1,1]')
            for p in (2 * q, 2 * q + 1):
                a(f'v_cvt_pk_bf16_f32 v{PK + p}, v{R + 2 * p}, v{R + 2 * p + 1}')
        step = {'x1': 256, 'x2': 512, 'out': 16}[kind]
        sr = sOUT if kind == 'out' else sWS
        st = [f'buffer_store_dwordx2 {vr(PK + 2 * m, 2)}, v{A0}, {srd(sr)}, s{sG0} offen offset:{step * m}' for m in range(4)]
        st = st[:3] + [f's_mov_b64 exec, s[{sT[4]}:{sT[5]}]', st[3], 's_mov_b64 exec, -1']
        if kind == 'out':
            for s in st:
                a(s)
            return
        self.stores(st)
        s0, q0, s1, q1 = PK + 10, PK + 11, PK + 12, PK + 13
        a(f'v_and_b32 v{PK + 8}, s{sT[4]}, v{PK + 6}\nv_and_b32 v{PK + 9}, s{sT[4]}, v{PK + 7}')
        a(f'v_mov_b32 v{s0}, 0\nv_mov_b32 v{q0}, 0\nv_mov_b32 v{s1}, 0\nv_mov_b32 v{q1}, 0')
        for p in range(8):
            src = PK + p if p < 6 else PK + 2 + p
            a(f'v_dot2c_f32_bf16 v{(s0, s1)[p & 1]}, s{sONES}, v{src}\nv_dot2c_f32_bf16 v{(q0, q1)[p & 1]}, v{src}, v{src}')
        a(f'v_pk_add_f32 {vr(s0, 2)}, {vr(s0, 2)}, {vr(s1, 2)}')
        a(f'v_mov_b32 v{s1}, v{s0}\nv_mov_b32 v{q1}, v{q0}')
        a(f'v_permlane32_swap_b32 v{s0}, v{s1}\nv_permlane32_swap_b32 v{q0}, v{q1}')
        a(f'v_pk_add_f32 {vr(s0, 2)}, {vr(s0, 2)}, {vr(s1, 2)}')
        self.stores(['s_mov_b32 exec_hi, 0', f'buffer_store_dwordx2 {vr(s0, 2)}, v{t}, {srd(sWS)}, s{sG1} offen', 's_mov_b32 exec_hi, -1'])
        for p in range(8):
            a(f'v_lshlrev_b32 v{vRES + 2 * p}, 16, v{PK + p}\nv_and_b32 v{vRES + 2 * p + 1}, 0xffff0000, v{PK + p}')
        self.flag(sT[9])

    def splitk_setup(self, base, tile_bytes, nks, kind):
        a = self.a
        a(f's_xor_b32 s{sT[6]}, s{sTB}, 1\ns_mul_i32 s{sT[6]}, s{sT[6]}, {tile_bytes}\ns_mul_i32 s{sT[7]}, s{sTB}, {tile_bytes}')
        a(f's_mul_i32 s{sT[8]}, s{sW}, {nks * 1024}\ns_add_u32 s{sT[8]}, s{sT[8]}, {base}')
        a(f's_add_u32 s{sT[6]}, s{sT[6]}, s{sT[8]}\ns_add_u32 s{sT[7]}, s{sT[7]}, s{sT[8]}')
        self.red_addr(kind)

    def splitk(self, order, afrag, kind, name, flag2=None, n1=None, after_pre=None, extra=()):
        a = self.a
        R, SM = self.RACC, self.RSUM
        BF, NB = 120, 16
        n = len(order)
        PRE = self.PRE + 2

        def ld(i):
            half, ks = order[i]
            if flag2 is not None and i == n1:
                self.wait('f2')
                self.check(vT[7], sT[1], vT[8], '0xff')
                a('s_mov_b64 exec, -1')
            a(f's_add_u32 s{sT[11]}, s{sT[6 + half]}, {(ks >> 2) * 4096}')
            self.iss(f'buffer_load_dwordx4 {vr(BF + 4 * (i % NB), 4)}, v{vL16}, {srd(sWS)}, s{sT[11]} offen offset:{(ks & 3) * 1024} sc1', ('b', i))
            if flag2 is not None and i == n1 - 6:
                a(f's_add_u32 s{sT[1]}, s{sT[1]}, {flag2}\ns_mov_b64 exec, 0xff')
                self.iss(f'buffer_load_dwordx2 {vr(vT[8], 2)}, v{vT[7]}, {srd(sWS)}, s{sT[1]} offen sc1', 'f2')
                a('s_mov_b64 exec, -1')
        for i in range(PRE):
            ld(i)
        last0 = max(i for i in range(n) if order[i][0] == 0)
        seen = set()
        fill = []
        w1 = None
        for i in range(n):
            half, ks = order[i]
            self.wait(('b', i))
            k = i - last0
            if k == 1:
                fill = self.red_write(2)
            if k == 2:
                fill = self.red_write(3)
            if k == 3:
                fill = ['s_waitcnt lgkmcnt(0)', 's_barrier'] + [f'ds_read_b128 {vr(SM + 4 * q, 4)}, v{vT[6]} offset:{4096 + 1024 * q}' for q in range(8)]
            if k == 5:
                fill = ['s_waitcnt lgkmcnt(0)'] + [f'v_add_f32 v{SM + r}, v{SM + r}, v{SM + 16 + r}' for r in range(8)]
            if k == 6:
                fill = [f'v_add_f32 v{SM + r}, v{SM + r}, v{SM + 16 + r}' for r in range(8, 16)]
            if i == n - 1:
                w1 = self.red_write(1)
            for bft in ((1, 0) if i == n - 1 else (0, 1)):
                blk = R + 16 * (bft + (2 if half == 0 else 0))
                c = vr(blk, 16) if (half, bft) in seen else '0'
                seen.add((half, bft))
                a(f'{MF32} {vr(blk, 16)}, {afrag(2 * ks + bft)}, {vr(BF + 4 * (i % NB), 4)}, {c}')
                h = (len(fill) + 1) // 2 if fill and bft == (1 if i == n - 1 else 0) else len(fill)
                if bft == (1 if i == n - 1 else 0):
                    if i + PRE < n:
                        ld(i + PRE)
                    if i + PRE == n and after_pre:
                        after_pre()
                elif extra:
                    assert i < 30
                    extra.pop(0)()
                for l in fill[:h]:
                    a(l)
                fill = fill[h:]
        self.stamp(name + 'loop')
        self.red_tail(kind, w1)
        self.stamp(name)

    def wo(self, L):
        a = self.a
        self.splitk_setup(WS_OF, 28672, 7, 'x1')
        a(f's_add_u32 s{sT[1]}, s{sT[1]}, {WS_FO}')
        self.poll(vT[7], sT[1], '0xff', vT[8])
        self.stamp('wopolled')
        self.splitk([(h, ks) for h in range(2) for ks in range(7)], wo_frag, 'x1', 'wo',
                    after_pre=lambda: self.touch(WS_HF, 114688, 56))

    def ffn1(self, L):
        a = self.a
        AC1, AC2, AF = 168, 200, 224
        a('s_barrier')
        for f in self.st_w1(1):
            f()
        RA = vT[10]
        a(f'v_add_u32 v{RA}, {L_A}, v{vL16}')
        a(f'v_lshlrev_b32 v{vT[0]}, 3, v{vLANE}')
        a(f's_lshl_b32 s{sT[0]}, s{sTT}, 7\ns_add_u32 s{sT[0]}, s{sT[0]}, {WS_FX1}')
        a(f's_mul_i32 s{sG0}, s{sTT}, 28672\ns_add_u32 s{sG0}, s{sG0}, {WS_X1F}\ns_add_u32 s{sG1}, s{sG0}, 14336')
        a(f's_lshl_b32 s{sT[2]}, s{sTT}, 12\ns_add_u32 s{sT[2]}, s{sT[2]}, {WS_ST1}')
        a(f'v_and_b32 v{vT[4]}, 15, v{vLANE}\nv_lshlrev_b32 v{vT[1]}, 4, v{vT[4]}\nv_lshrrev_b32 v{vT[5]}, 4, v{vLANE}\nv_lshl_add_u32 v{vT[4]}, v{vT[5]}, 10, v{vT[1]}')
        a(f's_lshl_b32 s{sT[3]}, s{sW}, 8\ns_add_u32 s{sT[3]}, s{sT[3]}, {L_SCR}\nv_lshrrev_b32 v{vT[6]}, 2, v{vT[1]}\nv_add_u32 v{vT[6]}, s{sT[3]}, v{vT[6]}')
        a(f's_and_b32 s{sT[3]}, s{sTB}, 3\ns_lshl_b32 s{sT[3]}, s{sT[3]}, 8\ns_add_u32 s{sT[3]}, s{sT[3]}, {L_SCR}')
        a(f'v_and_b32 v{vT[7]}, 31, v{vLANE}\nv_lshl_add_u32 v{vT[7]}, v{vT[7]}, 2, s{sT[3]}')
        H4, H2 = vT[8], vT[9]
        a(f'v_lshl_add_u32 v{H4}, v{vT[5]}, 9, v{vT[1]}\nv_lshrrev_b32 v{H2}, 1, v{vT[5]}\nv_lshl_add_u32 v{H2}, v{H2}, 9, v{vT[1]}')
        a(f'v_and_b32 v{vT[5]}, 1, v{vT[5]}\nv_lshl_add_u32 v{H2}, v{vT[5]}, 3, v{H2}')
        a(f's_mul_i32 s{sT[4]}, s{sTT}, 114688\ns_mul_i32 s{sT[5]}, s{sJ}, 7168\ns_add_u32 s{sT[4]}, s{sT[4]}, s{sT[5]}\ns_add_u32 s{sT[4]}, s{sT[4]}, {WS_HF}')
        a(f's_add_u32 s{sT[5]}, s{sT[4]}, 4096')
        a(f's_lshl_b32 s{sT[9]}, s{sTT}, 7\ns_lshl_b32 s{sT[8]}, s{sJ}, 3\ns_add_u32 s{sT[9]}, s{sT[9]}, s{sT[8]}\ns_add_u32 s{sT[9]}, s{sT[9]}, {WS_FH}')
        self.poll(vT[0], sT[0], '0xffff', vT[2])
        self.stamp('x1polled')

        def ldx(i):
            s, t = divmod(i, 2)
            if s % 4 == 0 and s:
                a(f's_add_u32 s{(sG0, sG1)[t]}, s{(sG0, sG1)[t]}, 4096')
            self.iss(f'buffer_load_dwordx4 {vr(vB + 4 * i, 4)}, v{vL16}, {srd(sWS)}, s{(sG0, sG1)[t]} offen offset:{(s % 4) * 1024} sc1', ('x', i))
        ST = AC2
        ops = [lambda i=i: ldx(i) for i in range(28)]
        for k in range(4):
            t, i = divmod(k, 2)
            ops.insert(6 + 3 * k, lambda t=t, i=i: self.iss(
                f'buffer_load_dwordx4 {vr(ST + 8 * t + 4 * i, 4)}, v{vT[4]}, {srd(sWS)}, s{sT[2]} offen offset:{256 * t + 512 * i} sc1', 'stat'))
        for i in range(self.PRE):
            ops.pop(0)()
        NMn = (vT[0], vT[1])
        fill = []
        for t in range(2):
            st = ST + 8 * t
            for o in range(2):
                fill += [f'v_add_f32 v{st + o}, v{st + o}, v{st + o + 2}', f'v_add_f32 v{st + o + 4}, v{st + o + 4}, v{st + o + 6}']
            for o in range(2):
                fill += [f'v_add_f32 v{st + o}, v{st + o}, v{st + o + 4}']
            for sw in ('16', '32'):
                fill += [f'v_mov_b32 v{st + 2}, v{st}', f'v_mov_b32 v{st + 3}, v{st + 1}', f'v_permlane{sw}_swap_b32 v{st}, v{st + 2}',
                         f'v_permlane{sw}_swap_b32 v{st + 1}, v{st + 3}', f'v_add_f32 v{st}, v{st}, v{st + 2}', f'v_add_f32 v{st + 1}, v{st + 1}, v{st + 3}']
            fill += self.ln_lines(st, st + 1, st + 2) + [f'v_mov_b32 v{NMn[t]}, v{st}']
        NR, LA = 8, 7

        def rd1(i):
            a(f'ds_read_b128 {vr(AF + 4 * (i % NR), 4)}, v{RA} offset:{1024 * i}')
        for i in range(LA):
            rd1(i)
        nxt = 0
        for i in range(56):
            s, n = divmod(i, 4)
            self.wait(('x', 2 * s + 1) if n == 0 else None, min(i + LA - 1, 55) - i)
            for t in range(2):
                acc = AC1 + 16 * t + 4 * n
                c = '0' if s == 0 else vr(acc, 4)
                a(f'{MF16} {vr(acc, 4)}, {vr(AF + 4 * (i % NR), 4)}, {vr(vB + 8 * s + 4 * t, 4)}, {c}')
                if t == 0:
                    if i + LA < 56:
                        rd1(i + LA)
                    if ops and nxt < 2 * s + self.PRE + 2:
                        ops.pop(0)()
                        nxt = max(k[1] for ph, k in self.seen if ph == self.phase and isinstance(k, tuple)) + 1
                elif self.vmn('stat') is None and fill and nxt > 14:
                    for _ in range(2):
                        if fill:
                            a(fill.pop(0))
            if i == 16:
                a('s_barrier')
        assert not ops and not fill, (len(ops), len(fill))
        a(f'ds_write_b32 v{vT[6]}, v{ST + 2}\nds_write_b32 v{vT[6]}, v{ST + 10} offset:64')
        self.stamp('ffn1p1')
        CS, NR, LA = 240, 4, 3
        a(f'v_add_u32 v{RA}, {56 * 1024}, v{RA}\nv_and_b32 v{vT[2]}, 48, v{vLANE}\nv_add_u32 v{vT[2]}, {L_CS1}, v{vT[2]}')
        for n in range(4):
            a(f'ds_read_b128 {vr(CS + 4 * n, 4)}, v{vT[2]} offset:{64 * n}')

        def rd2(i):
            a(f'ds_read_b128 {vr(AF + 4 * (i % NR), 4)}, v{RA} offset:{1024 * i}')
        for i in range(LA):
            rd2(i)
        fill = []
        for p in range(2):
            for t in range(2):
                base = AC1 + 16 * t + 8 * p
                for n in (2 * p, 2 * p + 1):
                    acc = AC1 + 16 * t + 4 * n
                    fill += [f'v_fmac_f32 v{acc + i}, v{CS + 4 * n + i}, v{NMn[t]}' for i in range(4)]
                for k in range(4):
                    fill += [f'v_cvt_pk_bf16_f32 v{base + k}, v{base + 2 * k}, v{base + 2 * k + 1}']
                fill += [f'v_pk_max_i16 v{base + k}, v{base + k}, 0' for k in range(4)]
        st1 = [f'buffer_store_dwordx4 {vr(AC1 + 16 * t + 8 * p, 4)}, v{H4}, {srd(sWS)}, s{sT[4]} offen offset:{2048 * p + 256 * t}'
               for p in range(2) for t in range(2)]
        w2 = self.w2_stream()[self.opt.get('w2a', 14):] if L == 0 else []
        if L == 0:
            self.touch(WS_XF, 28672, 14)
            self.touch(WS_ST2, 4096, 2)
        stored = None
        for i in range(42):
            s, n = divmod(i, 3)
            a(f's_waitcnt lgkmcnt({min(i + LA - 1, 41) - i})')
            for t in range(2):
                acc = AC2 + 12 * t + 4 * n
                c = '0' if s == 0 else vr(acc, 4)
                a(f'{MF16} {vr(acc, 4)}, {vr(AF + 4 * (i % NR), 4)}, {vr(vB + 8 * s + 4 * t, 4)}, {c}')
                if t == 0 and i + LA < 42:
                    rd2(i + LA)
                if i >= 1:
                    for _ in range(1 if t == 0 else 2):
                        if fill:
                            a(fill.pop(0))
            if not fill and stored is None:
                self.stores(st1)
                stored = i
            elif stored is not None and len(w2) > self.opt.get('w2c', 22):
                w2.pop(0)()
            if stored is not None and i == min(stored + 14, 41):
                self.flag_to(sT[9], vT[3])
        CS2 = vB
        for n in range(3):
            a(f'ds_read_b128 {vr(CS2 + 4 * n, 4)}, v{vT[2]} offset:{64 * (n + 4)}')
        self.stamp('ffn1p2')
        a(f'v_mov_b32 v{vT[2]}, v{NMn[1]}')
        a('s_waitcnt lgkmcnt(0)')
        st2 = []
        for t in range(2):
            base = AC2 + 12 * t
            for k in range(6):
                a(f'v_pk_fma_f32 {vr(base + 2 * k, 2)}, {vr(CS2 + 2 * k, 2)}, {vr((vT[0], vT[2])[t], 2)}, {vr(base + 2 * k, 2)} op_sel_hi:[1,0,1]')
            for k in range(6):
                a(f'v_cvt_pk_bf16_f32 v{base + k}, v{base + 2 * k}, v{base + 2 * k + 1}')
            for k in range(6):
                a(f'v_pk_max_i16 v{base + k}, v{base + k}, 0')
            st2 += [f'buffer_store_dwordx4 {vr(base, 4)}, v{H4}, {srd(sWS)}, s{sT[5]} offen offset:{256 * t}',
                    f'buffer_store_dwordx2 {vr(base + 4, 2)}, v{H2}, {srd(sWS)}, s{sT[5]} offen offset:{2048 + 256 * t}']
        self.stores(st2)
        a(f's_add_u32 s{sT[10]}, s{sT[9]}, {WS_FH2 - WS_FH}')
        self.stamp('ffn1')
        a('s_barrier')
        a(f'ds_read_b32 v{vR1}, v{vT[7]}')
        self.w2rest = w2

    def flag_to(self, soff, tmp):
        a = self.a
        n = self.vmn('st')
        a(f'v_mov_b32 v{tmp + 1}, s{sTAG}\nv_mov_b32 v{tmp + 2}, s{sTAG + 1}\nv_mov_b32 v{tmp}, 0')
        a('s_mov_b64 exec, 1')
        self.stores([f'buffer_store_dwordx2 {vr(tmp + 1, 2)}, v{tmp}, {srd(sWS)}, s{soff} offen'], False, pre=f's_waitcnt vmcnt({n})')
        self.vm = self.vm[len(self.vm) - n - 1:]
        a('s_mov_b64 exec, -1')

    def ffn2(self, L):
        a = self.a
        kind = 'x2' if L == 0 else 'out'
        self.splitk_setup(WS_HF, 114688, 28, kind)
        a(f's_add_u32 s{sT[1]}, s{sT[1]}, {WS_FH}')
        self.poll(vT[7], sT[1], '0xff', vT[8])
        self.flag(sT[10])
        self.stamp('ffn2polled')
        p1 = [7 * c + q for c in range(4) for q in range(4)]
        p2 = [7 * c + q for c in range(4) for q in range(4, 7)]
        order = [(0, k) for k in p1] + [(1, k) for k in p1] + [(0, k) for k in p2] + [(1, k) for k in p2]
        self.splitk(order, lambda i: ar(4 * i, 4), kind, 'ffn2', flag2=WS_FH2 - WS_FH, n1=32, extra=self.w2rest)

    def build(self):
        a = self.a
        self.names = []
        self.cold = []
        self.entry()
        for L in range(2):
            for nm, f in (('qkv', self.qkv), ('attn', self.attention), ('wo', self.wo), ('ffn1', self.ffn1), ('ffn2', self.ffn2)):
                f(L)
                self.maybe_stop(f'{nm}{L}')
                self.phase += 1
        if self.opt.get('epoch', 1):
            self.epoch()
        a('L_fin:')
        if self.prof:
            a('s_mov_b64 exec, -1')
            a(f's_memrealtime s[{sSTAMP}:{sSTAMP + 1}]\ns_waitcnt lgkmcnt(0)\nv_writelane_b32 v{vPROF}, s{sSTAMP}, 63')
            a(f's_lshl_b32 s{sT[0]}, s2, 2\ns_add_u32 s{sT[0]}, s{sT[0]}, s{sW}\ns_lshl_b32 s{sT[0]}, s{sT[0]}, 8\ns_add_u32 s{sT[0]}, s{sT[0]}, {WS_PROF}')
            a(f'v_lshlrev_b32 v{vT[0]}, 2, v{vLANE}')
            a(f'buffer_store_dword v{vPROF}, v{vT[0]}, {srd(sWS)}, s{sT[0]} offen')
        a('L_end:\ns_endpgm')
        for c in self.cold:
            for l in c:
                a(l)
        a('L_code_end:')
        body, nops = a.pad()
        head = open('cdna_kernels/' + NAME + '.s.ref').read().split('\n')
        cm = [l for l in head if l.startswith(';') and '@launch' not in l]
        cm = cm[:cm.index([c for c in cm if 'Override launch' in c][0])]
        out = cm + [f'; @launch grid=(256,1,1) block=(256,1,1) lds={LDS_BYTES}',
                    '.amdgcn_target "amdgcn-amd-amdhsa--gfx950"', '.text', f'.globl {NAME}_kernel', '.p2align 8',
                    f'.type {NAME}_kernel,@function', f'{NAME}_kernel:']
        out += body
        out += ['.section .rodata,"a"', '.p2align 6', f'.amdhsa_kernel {NAME}_kernel',
                '  .amdhsa_next_free_vgpr 512', '  .amdhsa_next_free_sgpr 102', '  .amdhsa_accum_offset 256',
                '  .amdhsa_group_segment_fixed_size 0', '  .amdhsa_kernarg_size 72', '  .amdhsa_user_sgpr_count 2',
                '  .amdhsa_user_sgpr_kernarg_segment_ptr 1', '  .amdhsa_system_sgpr_workgroup_id_x 1',
                '.end_amdhsa_kernel']
        return '\n'.join(out) + '\n', nops


if __name__ == '__main__':
    import argparse
    p = argparse.ArgumentParser()
    p.add_argument('-o', default='cdna_kernels/' + NAME + '.s')
    p.add_argument('--stop'); p.add_argument('--prof', action='store_true'); p.add_argument('--slow', action='store_true')
    x = p.parse_args()
    g = Gen(stop=x.stop, prof=x.prof, force_slow=x.slow)
    txt, nops = g.build()
    open(x.o, 'w').write(txt)
    print('lines', txt.count('\n'), 'nop states', nops)
```
